```python
import torch

def _softmax(x, axis=-1):
    return torch.softmax(x, dim=axis)
def _gelu(x):
    return torch.nn.functional.gelu(x, approximate="tanh")
def _silu(x):
    return torch.nn.functional.silu(x)
def _sigmoid(x):
    return torch.sigmoid(x)
def _layernorm(x, axis=-1, eps=1e-5):
    m = x.mean(dim=axis, keepdim=True)
    v = x.var(dim=axis, keepdim=True, unbiased=False)
    return (x - m) / torch.sqrt(v + eps)
def _scatter_add(tgt, idx, src, axis=0):
    return tgt.clone().index_add_(axis, idx, src)
def _segment_sum(src, seg, n):
    out = torch.zeros((n,) + src.shape[1:], dtype=src.dtype)
    return out.index_add_(0, seg, src)
def _pad(x, pw):
    flat = tuple(v for pair in reversed(pw) for v in pair)
    return torch.nn.functional.pad(x, flat)

kernel_name = 'interleave_layers__softmax_full_mha__mixer_s_mlp__prompt'

def setup_inputs():

    _w = (lambda a: (lambda t: t.to(torch.bfloat16) if t.is_floating_point() else t)(torch.as_tensor(a)))
    def _A_setup():
        B, S, D = 1, 2048, 448
        return {
            "x": _w((lambda *s: torch.randn(*s, dtype=torch.bfloat16) * 0.05)(B, S, D)),
            "wqkv": _w((lambda *s: torch.randn(*s, dtype=torch.bfloat16) * 0.05)(D, 3 * D)),
            "wo": _w((lambda *s: torch.randn(*s, dtype=torch.bfloat16) * 0.05)(D, D)),
        }
    _A_in = _A_setup()

    def _B_setup():
        B, S, D, F = 1, 2048, 448, 1792
        return {
            "x":  _w((lambda *s: torch.randn(*s, dtype=torch.bfloat16) * 0.05)(B, S, D)),
            "w1": _w((lambda *s: torch.randn(*s, dtype=torch.bfloat16) * 0.8)(D, D) * (D ** -0.5)),
            "w2": _w((lambda *s: torch.randn(*s, dtype=torch.bfloat16) * 0.8)(D, D) * (D ** -0.5)),
            "w3": _w((lambda *s: torch.randn(*s, dtype=torch.bfloat16) * 0.8)(D, F) * (D ** -0.5)),
            "w4": _w((lambda *s: torch.randn(*s, dtype=torch.bfloat16) * 0.8)(F, D) * (F ** -0.5)),
        }
    _B_in = _B_setup()

    return {
        "A_x": _A_in["x"],
        "A_wqkv": _A_in["wqkv"],
        "A_wo": _A_in["wo"],
        "B_x": _B_in["x"],
        "B_w1": _B_in["w1"],
        "B_w2": _B_in["w2"],
        "B_w3": _B_in["w3"],
        "B_w4": _B_in["w4"],
    }

def reference(A_x, A_wqkv, A_wo, B_x, B_w1, B_w2, B_w3, B_w4):
    def _A_ref(x, wqkv, wo):
        B, S, D = x.shape
        H = 16; Dh = D // H
        qkv = (lambda x, *d: x.permute(*d))((x @ wqkv).reshape(B, S, 3, H, Dh), 2, 0, 3, 1, 4)
        q, k, v = qkv[0], qkv[1], qkv[2]
        scale = Dh ** -0.5
        scores = torch.einsum("bhqd,bhkd->bhqk", q, k) * scale
        p = _softmax(scores, axis=-1)
        o = torch.einsum("bhqk,bhkd->bhqd", p, v)
        return (lambda x, *d: x.permute(*d))(o, 0, 2, 1, 3).reshape(B, S, D) @ wo

    def _B_ref(x, w1, w2, w3, w4):
        B, S, D = x.shape
        h = _gelu(_layernorm(x, axis=-1) @ w1)
        c = D // 4
        g0 = _pad(h[:, :, 0*c:1*c], ((0, 0), (1, 0), (0, 0)))[:, :S, :]
        g1 = _pad(h[:, :, 1*c:2*c], ((0, 0), (0, 1), (0, 0)))[:, 1:, :]
        g2 = _pad(h[:, :, 2*c:3*c], ((0, 0), (2, 0), (0, 0)))[:, :S, :]
        g3 = _pad(h[:, :, 3*c:   ], ((0, 0), (0, 2), (0, 0)))[:, 2:, :]
        hs = torch.concatenate([g0, g1, g2, g3], axis=-1) @ w2
        x1 = x + hs
        h2 = _gelu(_layernorm(x1, axis=-1) @ w3) @ w4
        return x1 + h2

    x = A_x
    x = x + _A_ref(_layernorm(x, axis=-1), A_wqkv, A_wo)
    x = x + _B_ref(_layernorm(x, axis=-1), B_w1, B_w2, B_w3, B_w4)
    x = x + _A_ref(_layernorm(x, axis=-1), A_wqkv, A_wo)
    x = x + _B_ref(_layernorm(x, axis=-1), B_w1, B_w2, B_w3, B_w4)
    return x
```

```python
import re

_RE_REG = re.compile(r'(?<![\w.])([vas])(\d+)(?![\w\[])|(?<![\w.])([vas])\[(\d+):(\d+)\]|(?<![\w.])(vcc|exec|m0)(?![\w])')
TRANS = ("v_exp_f32", "v_log_f32", "v_rcp_f32", "v_rsq_f32", "v_sqrt_f32", "v_sin_f32", "v_cos_f32")


def regs_of(op):
    out = []
    for m in _RE_REG.finditer(op):
        if m.group(1):
            out.append((m.group(1), int(m.group(2))))
        elif m.group(3):
            out += [(m.group(3), i) for i in range(int(m.group(4)), int(m.group(5)) + 1)]
        else:
            out.append((m.group(6), 0))
    return out


def split_ops(s):
    ops, depth, cur = [], 0, ""
    for ch in s:
        if ch == "[":
            depth += 1
        if ch == "]":
            depth -= 1
        if ch == "," and depth == 0:
            ops.append(cur.strip())
            cur = ""
        else:
            cur += ch
    if cur.strip():
        ops.append(cur.strip())
    return ops


class I:
    __slots__ = ("text", "op", "kind", "dst", "src", "srcC", "wide_store", "dpp", "lds_dma", "tag", "nstates")

    def __init__(self, text, tag=None):
        self.text = text
        self.tag = tag
        t = text.split(";")[0].strip()
        sp = t.split(None, 1)
        op = sp[0]
        self.op = op
        ops = split_ops(sp[1]) if len(sp) > 1 else []
        self.dst, self.src, self.srcC = [], [], []
        self.wide_store = False
        self.dpp = ("_dpp" in op) or ("row_ror" in t) or ("row_shr" in t) or ("quad_perm" in t) or ("row_bcast" in t)
        self.lds_dma = False
        self.nstates = 1
        R = regs_of
        if op.startswith("v_mfma"):
            self.kind = "mfma"
            self.dst = R(ops[0])
            self.src = R(ops[1]) + R(ops[2])
            self.srcC = R(ops[3])
        elif op.startswith("v_"):
            self.kind = "valu"
            if op.startswith("v_cmp"):
                self.dst = R(ops[0])
                self.src = sum((R(o) for o in ops[1:]), [])
            elif op.startswith("v_permlane"):
                self.dst = R(ops[0]) + R(ops[1])
                self.src = R(ops[0]) + R(ops[1])
                self.kind = "perm"
            elif op.startswith("v_readfirstlane") or op.startswith("v_readlane"):
                self.dst = R(ops[0])
                self.src = sum((R(o) for o in ops[1:]), [])
                self.kind = "rdlane"
            elif op.startswith("v_nop"):
                pass
            else:
                self.dst = R(ops[0])
                self.src = sum((R(o) for o in ops[1:]), [])
                if op.startswith(("v_fmac", "v_dot2c", "v_writelane", "v_pk_fmac")) or self.dpp:
                    self.src += self.dst
                if op.startswith("v_cndmask") and len(ops) == 3:
                    self.src.append(("vcc", 0))
                if op.split("_e32")[0].split("_e64")[0] in TRANS:
                    self.kind = "trans"
        elif op.startswith("buffer_load") or op.startswith("global_load"):
            self.kind = "vmem"
            if re.search(r"\blds\b", t):
                self.lds_dma = True
                self.src = sum((R(o) for o in ops), []) + [("m0", 0)]
            else:
                self.dst = R(ops[0])
                self.src = sum((R(o) for o in ops[1:]), [])
        elif op.startswith("buffer_store") or op.startswith("buffer_atomic") or op.startswith("global_store"):
            self.kind = "vmem"
            self.src = sum((R(o) for o in ops), [])
            if "x4" in op or "x3" in op:
                self.wide_store = R(ops[0])
            if op.startswith("buffer_atomic") and "sc0" in t:
                self.dst = R(ops[0])
        elif op.startswith("buffer_"):
            self.kind = "vmem"
        elif op.startswith("ds_read") or op.startswith("ds_bpermute") or op.startswith("ds_swizzle"):
            self.kind = "lds"
            self.dst = R(ops[0])
            self.src = sum((R(o) for o in ops[1:]), [])
        elif op.startswith("ds_"):
            self.kind = "lds"
            self.src = sum((R(o) for o in ops), [])
        elif op.startswith("s_load") or op.startswith("s_memtime") or op.startswith("s_memrealtime"):
            self.kind = "smem"
            self.dst = R(ops[0])
            self.src = sum((R(o) for o in ops[1:]), [])
        elif op == "s_nop":
            self.kind = "nop"
            self.nstates = int(ops[0], 0) + 1
        elif op == "s_waitcnt":
            self.kind = "wait"
        elif op.startswith("s_"):
            self.kind = "salu"
            if op.startswith(("s_cmp", "s_cbranch", "s_branch", "s_barrier", "s_endpgm", "s_sleep", "s_setprio", "s_bitcmp")):
                self.src = sum((R(o) for o in ops), [])
            else:
                self.dst = R(ops[0]) if ops else []
                self.src = sum((R(o) for o in ops[1:]), [])
                if "saveexec" in op:
                    self.dst = self.dst + [("exec", 0)]
        else:
            raise ValueError("unknown instruction: " + text)


class Asm:
    def __init__(self):
        self.out = []
        self.ins = []
        self.t = 0
        self.wr = {}
        self.cread = {}
        self.wstore = {}
        self.vm = []
        self.lg = []
        self.smem = False
        self.auto = True
        self.nnop = 0
        self.labels = {}

    def raw(self, s):
        self.out.append(s)
        self.ins.append(None)

    def comment(self, s):
        self.raw("    ; " + s)

    def label(self, name):
        self.labels[name] = len(self.out)
        self.raw(name + ":")

    def _emit(self, ins):
        self.out.append("    " + ins.text)
        self.ins.append(ins)
        self.t += ins.nstates

    def _need(self, ins):
        need = 0
        t = self.t

        def req(t0, n):
            nonlocal need
            have = t - t0 - 1
            if n - have > need:
                need = n - have
        k = ins.kind
        valu_like = k in ("valu", "trans", "perm", "rdlane")
        for r in ins.src + ins.srcC + (ins.dst if (valu_like or k in ("vmem", "lds")) else []):
            w = self.wr.get(r)
            if not w:
                continue
            t0, wk, extra = w
            is_src = (r in ins.src) or (r in ins.srcC)
            if wk == "mfma":
                if k == "mfma":
                    if r in ins.src:
                        req(t0, 12)
                    elif r in ins.srcC:
                        if tuple(ins.srcC) != extra:
                            req(t0, 10)
                else:
                    req(t0, 12)
            elif wk in ("valu", "trans", "perm") and is_src:
                if r[0] in ("v", "a"):
                    if k == "mfma":
                        req(t0, 2)
                    if k == "perm" or ins.dpp:
                        req(t0, 2)
                    if k == "rdlane":
                        req(t0, 1)
                    if wk == "trans" and valu_like:
                        req(t0, 1)
                    if extra == "dot" and valu_like and not ins.op.startswith("v_dot"):
                        req(t0, 3)
                    if extra == "dot" and k in ("vmem", "lds"):
                        req(t0, 3)
                else:
                    if valu_like:
                        req(t0, 2)
                    if k in ("vmem",):
                        req(t0, 5)
                    if k == "salu":
                        req(t0, 1)
            elif wk == "rdlane" and is_src:
                if valu_like:
                    req(t0, 2)
                if k == "vmem":
                    req(t0, 5)
                if k == "salu":
                    req(t0, 1)
            elif wk == "salu" and r == ("m0", 0) and ins.lds_dma:
                req(t0, 1)
        if k == "mfma":
            for r in ins.dst:
                w = self.wr.get(r)
                if w and w[1] == "mfma" and tuple(ins.srcC) != w[2]:
                    req(w[0], 10)
        if valu_like or k in ("vmem", "lds"):
            for r in ins.dst:
                if r in self.cread:
                    req(self.cread[r], 7)
                if r in self.wstore:
                    req(self.wstore[r], 2)
        return need

    def _waits(self, ins):
        touched = set(ins.src) | set(ins.dst) | set(ins.srcC)
        nv = nl = None
        for i, (d, tag) in enumerate(self.vm):
            if d & touched:
                nv = len(self.vm) - 1 - i
        for i, (d, tag) in enumerate(self.lg):
            if d & touched:
                nl = len(self.lg) - 1 - i
        return nv, nl

    def wait(self, vm=None, lg=None):
        parts = []
        if vm is not None:
            vm = min(vm, 63)
            if vm < len(self.vm) or not self.auto:
                parts.append("vmcnt(%d)" % vm)
                self.vm = self.vm[len(self.vm) - vm:] if vm else []
        if lg is not None:
            lg = min(lg, 15)
            if lg < len(self.lg) or self.smem or not self.auto:
                parts.append("lgkmcnt(%d)" % lg)
                self.lg = self.lg[len(self.lg) - lg:] if lg else []
                if lg == 0:
                    self.smem = False
        if parts:
            self._emit(I("s_waitcnt " + " ".join(parts)))

    def force_wait(self, vm=None, lg=None):
        a = self.auto
        self.auto = False
        self.wait(vm, lg)
        self.auto = a

    def wait_tag(self, tag):
        idx = None
        for i, (d, tg) in enumerate(self.vm):
            if tg == tag:
                idx = i
        if idx is not None:
            self.wait(vm=len(self.vm) - 1 - idx)

    def __call__(self, text, tag=None):
        for line in text.split("\n"):
            line = line.strip()
            if not line:
                continue
            if line.startswith(";"):
                self.raw("    " + line)
                continue
            if line.startswith("@wait_tag"):
                self.wait_tag(line.split()[1])
                continue
            if line.endswith(":"):
                self.label(line[:-1])
                continue
            tg = tag
            if "@" in line:
                line, tg = line.split("@")
                line = line.strip()
                tg = tg.strip()
            self.one(I(line, tg))

    def lines(self, lst):
        for l in lst:
            self(l)

    def one(self, ins):
        if ins.kind == "wait":
            m = re.search(r"vmcnt\((\d+)\)", ins.text)
            n = re.search(r"lgkmcnt\((\d+)\)", ins.text)
            self.force_wait(int(m.group(1)) if m else None, int(n.group(1)) if n else None)
            return
        if self.auto:
            nv, nl = self._waits(ins)
            if nv is not None or nl is not None:
                self.wait(nv, nl)
        need = self._need(ins)
        while need > 0:
            n = min(need, 16)
            self._emit(I("s_nop %d" % (n - 1)))
            self.nnop += n
            need -= n
        t0 = self.t
        self._emit(ins)
        k = ins.kind
        if k == "vmem":
            self.vm.append((set(ins.dst), ins.tag))
            for r in ins.dst:
                self.wr.pop(r, None)
            if ins.wide_store:
                for r in ins.wide_store:
                    self.wstore[r] = t0
        elif k == "lds":
            self.lg.append((set(ins.dst), ins.tag))
            for r in ins.dst:
                self.wr.pop(r, None)
        elif k == "smem":
            self.smem = True
        elif k == "mfma":
            for r in ins.dst:
                self.wr[r] = (t0, "mfma", tuple(ins.dst))
            for r in ins.srcC:
                self.cread[r] = t0
        elif k in ("valu", "trans", "perm", "rdlane", "salu"):
            for r in ins.dst:
                self.wr[r] = (t0, k, "dot" if ins.op.startswith("v_dot") else None)

    def settle(self):
        need = 0
        for r, (t0, wk, extra) in self.wr.items():
            n = {"mfma": 12, "valu": 5 if r[0] not in "va" else 2, "trans": 2, "perm": 2, "rdlane": 5, "salu": 1 if r[0] == "m0" else 0}[wk]
            if extra == "dot":
                n = 3
            need = max(need, n - (self.t - t0 - 1))
        for r, t0 in self.cread.items():
            need = max(need, 7 - (self.t - t0 - 1))
        for r, t0 in self.wstore.items():
            need = max(need, 2 - (self.t - t0 - 1))
        while need > 0:
            n = min(need, 16)
            self._emit(I("s_nop %d" % (n - 1)))
            need -= n

    def join(self):
        self.wait(vm=0, lg=0)
        self.settle()

    def check_backedge(self, label, n=16):
        i = self.labels[label]
        t_save = self.t
        cnt = 0
        self.t += 1
        while cnt < n and i < len(self.ins):
            ins = self.ins[i]
            i += 1
            if ins is None:
                continue
            need = self._need(ins)
            assert need <= 0, "back-edge hazard at %s: %s needs %d" % (label, ins.text, need)
            self.t += ins.nstates
            cnt += 1
        self.t = t_save

    def text(self):
        return "\n".join(self.out) + "\n"


def interleave(main, filler, start=0, end=None):
    out = []
    end = len(main) if end is None else end
    n = max(end - start, 1)
    done = 0
    for i, m in enumerate(main):
        out += m if isinstance(m, list) else [m]
        if start <= i < end:
            want = (len(filler) * (i - start + 1) + n - 1) // n
            out += filler[done:want]
            done = want
    out += filler[done:]
    return out
```

```python
import sys, math, struct
from asmlib import Asm, interleave

NAME = "interleave_layers__softmax_full_mha__mixer_s_mlp__prompt"


def f2u(x):
    return struct.unpack("<I", struct.pack("<f", x))[0]


def fx(x):
    return "0x%08x" % f2u(x)


TS_OFF = 0x20000
LB0, LBSTR = 0x100000, 0x2000000
Q_OFF, KV_OFF, O_OFF = 0x0, 0x200000, 0x600000
XM_OFF, H_OFF, X1_OFF, XO_OFF, G_OFF = 0x800000, 0xA00000, 0xC00000, 0xE00000, 0x1000000
SM_OFF, S1_OFF, SO_OFF, QN_OFF, KN_OFF = 0x1800000, 0x1840000, 0x1880000, 0x18C0000, 0x18C4000
WS_SIZE = 0x4100000
OOB = 0x40000000
LA, LBB, LC, LEND = 0, 57344, 114688, 163840
QKVW = LBB
SECPOS = {1: 0, 0: 28672, 2: 57344}
QSCR = LC + 28672
W3SCR = LEND - 2048

sX, sWQ, sWO, sW1, sW2, sW3, sW4, sOUT, sDBG, sWS = [f"s[{4*i}:{4*i+3}]" for i in range(1, 11)]
sW, sXCD, sSLOT, sLAYER, sLB = "s44", "s45", "s46", "s47", "s48"
sQTB, sQH, sAH, sAQB, sTB64, sFT, sT128, sF3 = "s49", "s50", "s51", "s52", "s53", "s54", "s55", "s56"
sACT, sKH, sNI, sTB32 = "s57", "s58", "s59", "s60"
sFL = [f"s{64+i}" for i in range(7)]
sT = [f"s{72+i}" for i in range(8)]
sEX = "s[80:81]"
sHI = "s[82:83]"
sPADM = "s[84:85]"
sPM = "s[86:87]"
sONES = "s88"
sC = [f"s{90+i}" for i in range(6)]
sTSV = "s[96:97]"
vL, vL16, vL4, vTR, vTQ, vDM, vM, vR1 = "v1", "v2", "v3", "v4", "v5", "v6", "v8", "v9"
vTS = "v7"
vT = [f"v{10+i}" for i in range(6)]
aRES = 240


def vr(b, n=4):
    return f"v[{b}:{b+n-1}]"


def ar(b, n=4):
    return f"a[{b}:{b+n-1}]"


class Gen:
    def __init__(self, stop=None, prof=False, force_fallback=False):
        self.A = Asm()
        self.stop = stop
        self.prof = prof
        self.force_fallback = force_fallback
        self.uid = 0
        self.nts = 0
        self.tsnames = []

    def lab(self, s):
        self.uid += 1
        return f"L_{s}_{self.uid}"

    def ts(self, name):
        if not self.prof:
            return
        A = self.A
        i = self.nts
        self.nts += 1
        self.tsnames.append(name)
        A(f"s_memrealtime {sTSV}")
        A("s_waitcnt lgkmcnt(0)")
        A(f"v_writelane_b32 {vTS}, s96, {i}")

    def ts_store(self):
        if not self.prof:
            return
        A = self.A
        A.settle()
        A(f"s_lshl_b32 {sT[0]}, s2, 2")
        A(f"s_add_u32 {sT[0]}, {sT[0]}, {sW}")
        A(f"s_lshl_b32 {sT[0]}, {sT[0]}, 1")
        A(f"s_add_u32 {sT[0]}, {sT[0]}, {sLAYER}")
        A(f"s_lshl_b32 {sT[0]}, {sT[0]}, 8")
        A(f"s_add_u32 {sT[0]}, {sT[0]}, {TS_OFF}")
        A(f"buffer_store_dword {vTS}, {vL4}, {sWS}, {sT[0]} offen")

    def phase_end(self, name):
        if self.stop and self.stop[0] == name:
            A = self.A
            A.join()
            A(f"s_cmp_eq_u32 {sLAYER}, {self.stop[1]}")
            A("s_cbranch_scc1 L_finish")

    def signal(self, t):
        A = self.A
        A("s_waitcnt vmcnt(0) lgkmcnt(0)")
        A("s_barrier")
        l = self.lab("sig")
        A(f"s_cmp_lg_u32 {sW}, 0")
        A(f"s_cbranch_scc1 {l}")
        A(f"s_add_u32 {sT[0]}, {sLAYER}, 1")
        A(f"v_mov_b32 {vT[0]}, {sT[0]}")
        A(f"v_mov_b32 {vT[1]}, 0")
        A("s_mov_b64 exec, 1")
        A(f"buffer_store_dword {vT[0]}, {vT[1]}, {sWS}, {sFL[t]} offen sc1")
        A("s_mov_b64 exec, -1")
        A.settle()
        A.vm = []
        A(f"{l}:")

    def poll(self, addr_lines, mask_lines, bias=1, srd=sWS, eq=None):
        A = self.A
        l = self.lab("poll")
        A.join()
        A(f"s_cmp_lg_u32 {sW}, 0")
        A(f"s_cbranch_scc1 {l}_done")
        A.lines(addr_lines)
        A.lines(mask_lines)
        if eq is None:
            A(f"s_add_u32 {sT[0]}, {sLAYER}, {bias}")
        else:
            A(f"s_mov_b32 {sT[0]}, {eq}")
        A(f"s_mov_b64 exec, {sPM}")
        A(f"s_mov_b32 {sT[1]}, 0")
        A.settle()
        A(f"{l}_loop:")
        A(f"buffer_load_dword {vT[1]}, {vT[0]}, {srd}, 0 offen sc1")
        A(f"s_add_u32 {sT[1]}, {sT[1]}, 1")
        A(f"s_cmp_gt_u32 {sT[1]}, 0x40000")
        A(f"s_cbranch_scc1 {l}_out")
        A("s_waitcnt vmcnt(0)")
        A(f"v_cmp_gt_u32 vcc, {sT[0]}, {vT[1]}")
        A(f"s_cbranch_vccnz {l}_loop")
        A(f"{l}_out:")
        A("s_waitcnt vmcnt(0)")
        A("s_mov_b64 exec, -1")
        A(f"{l}_done:")
        A("s_barrier")

    def poll_simple(self, t, group_sgpr, nmemb):
        self.poll([f"s_lshl_b32 {sT[2]}, {group_sgpr}, 7", f"s_add_u32 {sT[2]}, {sT[2]}, {t*8192}",
                   f"v_add_u32 {vT[0]}, {sT[2]}, {vL4}"],
                  [f"s_mov_b64 {sPM}, {hex((1 << nmemb) - 1)}"])

    def poll_lines(self, t, first_line_lines, mask_lines, bias=1):
        self.poll(first_line_lines + [
            f"s_lshl_b32 {sT[2]}, {sT[2]}, 7", f"s_add_u32 {sT[2]}, {sT[2]}, {t*8192}",
            f"v_lshrrev_b32 {vT[1]}, 3, {vL}", f"v_lshlrev_b32 {vT[1]}, 7, {vT[1]}",
            f"v_and_b32 {vT[0]}, 7, {vL}", f"v_lshlrev_b32 {vT[0]}, 2, {vT[0]}",
            f"v_add3_u32 {vT[0]}, {vT[0]}, {vT[1]}, {sT[2]}"], mask_lines, bias=bias)

    def dma_tile64(self, srd, stride, col_lines, lds_base, vdm, ninstr=14, row0_mul=None):
        L = list(col_lines)
        L += [f"s_mul_i32 {sT[4]}, {sW}, {14*8*stride}", f"s_add_u32 {sT[3]}, {sT[3]}, {sT[4]}",
              f"s_mul_i32 {sT[4]}, {sW}, {14*1024}", f"s_add_u32 m0, {sT[4]}, {lds_base}"]
        for i in range(ninstr):
            if i:
                L += [f"s_add_u32 {sT[3]}, {sT[3]}, {8*stride}", "s_add_u32 m0, m0, 1024"]
            L += [f"buffer_load_dwordx4 {vdm}, {srd}, {sT[3]} offen lds @dma"]
        return L

    def dm_lane(self, dst, stride):
        t = vT[5]
        return [f"v_lshrrev_b32 {dst}, 5, {vL}", f"v_lshlrev_b32 {dst}, 2, {dst}",
                f"v_bfe_u32 {t}, {vL}, 2, 2", f"v_add_u32 {dst}, {dst}, {t}",
                f"v_mul_u32_u24 {dst}, {stride}, {dst}",
                f"v_bfe_u32 {t}, {vL}, 4, 1", f"v_lshlrev_b32 {t}, 6, {t}", f"v_add_u32 {dst}, {dst}, {t}",
                f"v_and_b32 {t}, 3, {vL}", f"v_lshlrev_b32 {t}, 4, {t}", f"v_add_u32 {dst}, {dst}, {t}"]

    def dma_qkvw(self):
        t, d = vT[5], vT[4]
        L = [f"v_lshrrev_b32 {d}, 2, {vL}", f"v_mul_u32_u24 {d}, 2688, {d}",
             f"v_and_b32 {t}, 3, {vL}", f"v_lshlrev_b32 {t}, 4, {t}", f"v_add_u32 {d}, {d}, {t}",
             f"s_mul_i32 {sT[2]}, {sQH}, 56", f"s_mul_i32 {sT[4]}, {sW}, {7*16*2688}",
             f"s_add_u32 {sT[2]}, {sT[2]}, {sT[4]}", f"s_mul_i32 {sT[4]}, {sW}, {7*1024}"]
        for sec in (2, 1, 0):
            L += [f"s_add_u32 {sT[3]}, {sT[2]}, {sec*896}", f"s_add_u32 m0, {sT[4]}, {QKVW + SECPOS[sec]}"]
            for i in range(7):
                if i:
                    L += [f"s_add_u32 {sT[3]}, {sT[3]}, {16*2688}", "s_add_u32 m0, m0, 1024"]
                L += [f"buffer_load_dwordx4 {d}, {sWQ}, {sT[3]} offen lds @wq"]
        return L

    def frag_loads(self, regs, base_lines, n, vaddr=vL16, flag="sc1", s=None):
        s = s or sT[3]
        L = list(base_lines)
        for i in range(n):
            if i and i % 4 == 0:
                L.append(f"s_add_u32 {s}, {s}, 4096")
            L.append(f"buffer_load_dwordx4 {regs(i)}, {vaddr}, {sWS}, {s} offen offset:{(i%4)*1024} {flag}")
        return L

    def stats_loads(self, off, tb, dst):
        L = [f"s_mul_i32 {sT[5]}, {tb}, 3584", f"s_add_u32 {sT[5]}, {sT[5]}, {off}",
             f"v_lshlrev_b32 {vT[3]}, 3, {vL}"]
        for i in range(7):
            L.append(f"buffer_load_dwordx2 {vr(dst+2*i, 2)}, {vT[3]}, {sWS}, {sT[5]} offen offset:{i*512} sc1")
        return L

    def stats_sum(self, src, s1, s2):
        L = []
        n = 14
        cur = [src + i for i in range(n)]
        while len(cur) > 1:
            nxt = []
            for i in range(0, len(cur) - 1, 2):
                L.append(f"v_add_f32 v{cur[i]}, v{cur[i]}, v{cur[i+1]}")
                nxt.append(cur[i])
            if len(cur) % 2:
                nxt.append(cur[-1])
            cur = nxt
        L += [f"v_mov_b32 {s1}, v{cur[0]}", f"v_mov_b32 {s2}, v{cur[0]}", f"v_permlane32_swap_b32 {s1}, {s2}"]
        return L

    def stats_fin(self, s1, s2, m, var):
        return [f"v_mul_f32 {m}, {sC[0]}, {s1}", f"v_mul_f32 {var}, {sC[0]}, {s2}",
                f"v_fma_f32 {var}, -{m}, {m}, {var}", f"v_max_f32 {var}, 0, {var}"]

    def stats_out(self, val, off, tmp):
        a, b = f"v{tmp}", f"v{tmp+1}"
        a2, b2 = f"v{tmp+2}", f"v{tmp+3}"
        L = [f"v_add_f32 {a}, v{val}, v{val+1}", f"v_mul_f32 {b}, v{val}, v{val}",
             f"v_add_f32 {a2}, v{val+2}, v{val+3}", f"v_mul_f32 {b2}, v{val+1}, v{val+1}"]
        for i in range(2, 16):
            L.append(f"v_fmac_f32 {b if i % 2 == 0 else b2}, v{val+i}, v{val+i}")
            if i >= 4:
                L.append(f"v_add_f32 {a if i % 2 == 0 else a2}, {a if i % 2 == 0 else a2}, v{val+i}")
        L += [f"v_add_f32 {a}, {a}, {a2}", f"v_add_f32 {b}, {b}, {b2}",
              f"v_permlane32_swap_b32 {a}, {b}", f"v_add_f32 {a}, {a}, {b}",
              f"s_mul_i32 {sT[5]}, {sTB32}, 3584", f"s_lshl_b32 {sT[6]}, {sFT}, 9", f"s_add_u32 {sT[5]}, {sT[5]}, {sT[6]}",
              f"s_lshl_b32 {sT[6]}, {sKH}, 2", f"s_add_u32 {sT[5]}, {sT[5]}, {sT[6]}",
              f"s_add_u32 {sT[5]}, {sT[5]}, {sLB}", f"s_add_u32 {sT[5]}, {sT[5]}, {off}",
              f"v_lshlrev_b32 {b}, 3, {vL}",
              f"buffer_store_dword {a}, {b}, {sWS}, {sT[5]} offen sc1"]
        return L

    def pack_store(self, val, tmp, soff, off0=0):
        L = []
        for d in range(8):
            L.append(f"v_cvt_pk_bf16_f32 v{tmp+d}, v{val+2*d}, v{val+2*d+1}")
            if d == 3:
                L.append(f"buffer_store_dwordx4 {vr(tmp)}, {vL16}, {sWS}, {soff} offen offset:{off0} sc1")
        L.append(f"buffer_store_dwordx4 {vr(tmp+4)}, {vL16}, {sWS}, {soff} offen offset:{off0+1024} sc1")
        return L

    def tile_off(self, off, s):
        return [f"s_mul_i32 {s}, {sTB32}, 28672", f"s_lshl_b32 {sT[6]}, {sFT}, 12", f"s_add_u32 {s}, {s}, {sT[6]}",
                f"s_lshl_b32 {sT[6]}, {sKH}, 11", f"s_add_u32 {s}, {s}, {sT[6]}",
                f"s_add_u32 {s}, {s}, {sLB}", f"s_add_u32 {s}, {s}, {off}"]

    def tr(self, dst, vaddr, off, second):
        kind, b = dst
        r = vr if kind == "v" else ar
        return [f"ds_read_b64_tr_b16 {r(b,2)}, {vaddr} offset:{off}",
                f"ds_read_b64_tr_b16 {r(b+2,2)}, {vaddr} offset:{off+second}"]

    def colsum(self, vaddr, off_of, second, acc, stage, ones):
        L = [f"v_mov_b32 v{ones+i}, {sONES}" for i in range(4)]
        D = 6
        for ks in range(D):
            L += self.tr(("v", stage + 4 * (ks % 8)), vaddr, off_of(ks), second)
        for ks in range(28):
            L.append(f"v_mfma_f32_32x32x16_bf16 {vr(acc,16)}, {vr(stage+4*(ks%8))}, {vr(ones)}, {vr(acc,16) if ks else '0'}")
            if ks + D < 28:
                L += self.tr(("v", stage + 4 * ((ks + D) % 8)), vaddr, off_of(ks + D), second)
        return L

    def gelu(self, acc, cs, m, ka, kb, iR, tmp):
        L = []
        for g in range(0, 16, 4):
            r = range(g, g + 4)
            L += [f"v_fma_f32 v{acc+i}, -{m}, v{cs+i}, v{acc+i}" for i in r]
            L += [f"v_mul_f32 v{tmp+i-g}, v{acc+i}, v{acc+i}" for i in r]
            L += [f"v_fma_f32 v{tmp+i-g}, v{tmp+i-g}, {kb}, {ka}" for i in r]
            L += [f"v_mul_f32 v{tmp+i-g}, v{tmp+i-g}, v{acc+i}" for i in r]
            L += [f"v_exp_f32 v{tmp+i-g}, v{tmp+i-g}" for i in r]
            L += [f"v_fma_f32 v{tmp+i-g}, v{tmp+i-g}, {iR}, {iR}" for i in r]
            L += [f"v_rcp_f32 v{tmp+i-g}, v{tmp+i-g}" for i in r]
            L += [f"v_mul_f32 v{acc+i}, v{acc+i}, v{tmp+i-g}" for i in r]
        return L

    def gelu_consts(self, R, ka, kb, iR):
        return [f"v_mul_f32 {ka}, {sC[2]}, {R}", f"v_mul_f32 {kb}, {R}, {R}", f"v_mul_f32 {kb}, {kb}, {R}",
                f"v_mul_f32 {kb}, {sC[3]}, {kb}", f"v_rcp_f32 {iR}, {R}"]

    def prologue(self):
        A = self.A
        A("s_cmp_ge_u32 s2, 256")
        A("s_cbranch_scc1 L_exit")
        A("s_load_dwordx16 s[48:63], s[0:1], 0")
        A("s_load_dwordx4 s[64:67], s[0:1], 64")
        A("s_load_dwordx2 s[68:69], s[0:1], 80")
        A(f"v_and_b32 {vL}, 63, v0")
        A(f"v_lshrrev_b32 {vT[0]}, 6, v0")
        A(f"v_lshlrev_b32 {vL16}, 4, {vL}")
        A(f"v_readfirstlane_b32 {sW}, {vT[0]}")
        A(f"v_lshlrev_b32 {vL4}, 2, {vL}")
        A(f"v_mov_b32 {vTS}, 0")
        A("s_waitcnt lgkmcnt(0)")
        srcs = [(48, 2048 * 896), (50, 448 * 2688), (52, 448 * 896), (56, 448 * 896), (58, 448 * 896),
                (60, 448 * 3584), (62, 1792 * 896), (64, 2048 * 896), (66, 256), (68, WS_SIZE)]
        for i, (p, n) in enumerate(srcs):
            b = 4 + 4 * i
            A(f"s_mov_b32 s{b}, s{p}")
            A(f"s_mov_b32 s{b+1}, s{p+1}")
            A(f"s_mov_b32 s{b+2}, {n}")
            A(f"s_mov_b32 s{b+3}, 0x20000")
        A(f"s_and_b32 {sXCD}, s2, 7")
        A(f"s_lshr_b32 {sSLOT}, s2, 3")
        A(f"s_mov_b32 {sLAYER}, 0")
        A(f"s_mov_b32 {sLB}, {LB0}")
        self.ts("start")
        A(f"s_lshr_b32 {sT[0]}, {sSLOT}, 4")
        A(f"s_lshl_b32 {sT[1]}, {sXCD}, 1")
        A(f"s_add_u32 {sAH}, {sT[0]}, {sT[1]}")
        A(f"s_and_b32 {sQH}, {sSLOT}, 15")
        A(f"s_mov_b32 {sAQB}, {sQH}")
        A(f"s_lshl_b32 {sQTB}, {sAH}, 2")
        A(f"s_add_u32 {sQTB}, {sQTB}, {sW}")
        A(f"s_cmp_lt_u32 {sSLOT}, 28")
        A(f"s_cselect_b32 {sACT}, 1, 0")
        A(f"s_mul_i32 {sT[0]}, {sSLOT}, 37")
        A(f"s_lshr_b32 {sT[0]}, {sT[0]}, 8")
        A(f"s_mul_i32 {sT[1]}, {sT[0]}, 7")
        A(f"s_sub_u32 {sFT}, {sSLOT}, {sT[1]}")
        A(f"s_lshl_b32 {sT[1]}, {sXCD}, 2")
        A(f"s_add_u32 {sTB64}, {sT[0]}, {sT[1]}")
        A(f"s_lshr_b32 {sT[0]}, {sT[0]}, 1")
        A(f"s_mul_i32 {sT[1]}, {sT[0]}, 14")
        A(f"s_sub_u32 {sF3}, {sSLOT}, {sT[1]}")
        A(f"s_lshl_b32 {sT[1]}, {sXCD}, 1")
        A(f"s_add_u32 {sT128}, {sT[0]}, {sT[1]}")
        A(f"s_lshr_b32 {sKH}, {sW}, 1")
        A(f"s_and_b32 {sNI}, {sW}, 1")
        A(f"s_lshl_b32 {sTB32}, {sTB64}, 1")
        A(f"s_add_u32 {sTB32}, {sTB32}, {sNI}")
        def fl(t, g, m):
            A(f"s_lshl_b32 {sT[0]}, {g}, 7")
            A(f"s_lshl_b32 {sT[1]}, {m}, 2")
            A(f"s_add_u32 {sT[0]}, {sT[0]}, {sT[1]}")
            A(f"s_add_u32 {sFL[t]}, {sT[0]}, {t*8192}")
        fl(0, sQH, sAH)
        fl(1, sAQB, sAH)
        for t in (2, 3, 4, 6):
            fl(t, sTB64, sFT)
        fl(5, sT128, sF3)
        A("s_mov_b32 s82, 0")
        A("s_mov_b32 s83, -1")
        A("s_mov_b32 s84, 0xf0000000")
        A("s_mov_b32 s85, 0xf0000000")
        A(f"s_mov_b32 {sONES}, 0x3f803f80")
        k0 = -2.0 * math.log2(math.e) * math.sqrt(2.0 / math.pi)
        for i, c in enumerate([1.0 / 448, 1e-5, k0, k0 * 0.044715, 28 ** -0.5 * math.log2(math.e), 3000.0]):
            A(f"s_mov_b32 {sC[i]}, {fx(c)}")
        t = vT[0]
        A(f"v_bfe_u32 {vTQ}, {vL}, 2, 2")
        A(f"v_lshlrev_b32 {vTQ}, 6, {vTQ}")
        A(f"v_bfe_u32 {t}, {vL}, 4, 1")
        A(f"v_lshlrev_b32 {t}, 5, {t}")
        A(f"v_add_u32 {vTQ}, {vTQ}, {t}")
        A(f"v_and_b32 {t}, 3, {vL}")
        A(f"v_lshlrev_b32 {t}, 3, {t}")
        A(f"v_add_u32 {vTQ}, {vTQ}, {t}")
        A(f"v_lshrrev_b32 {t}, 5, {vL}")
        A(f"v_lshlrev_b32 {t}, 9, {t}")
        A(f"v_add_u32 {vTR}, {vTQ}, {t}")
        A.lines(self.dm_lane(vDM, 896))
        l = self.lab("init")
        A(f"s_cmp_lg_u32 {sW}, 0")
        A(f"s_cbranch_scc1 {l}")
        A(f"v_mov_b32 {vT[0]}, 0")
        A("s_mov_b64 exec, 1")
        for t in range(2):
            A(f"buffer_store_dword {vT[0]}, {vT[0]}, {sWS}, {sFL[t]} offen sc1")
        A(f"s_cmp_eq_u32 {sACT}, 0")
        A(f"s_cbranch_scc1 {l}_b")
        for t in range(2, 7):
            A(f"buffer_store_dword {vT[0]}, {vT[0]}, {sWS}, {sFL[t]} offen sc1")
        A(f"{l}_b:")
        A(f"s_and_b32 {sT[0]}, s2, 63")
        A(f"s_lshl_b32 {sT[0]}, {sT[0]}, 2")
        A(f"v_mov_b32 {vT[1]}, 1")
        A("s_waitcnt vmcnt(0)")
        A(f"buffer_atomic_add {vT[1]}, {vT[0]}, {sDBG}, {sT[0]} offen sc1")
        A("s_mov_b64 exec, -1")
        A.settle()
        A.vm = []
        A(f"{l}:")

    def qkv_colsum(self):
        A = self.A
        l = self.lab("qcs")
        A(f"s_cmp_eq_u32 {sW}, 3")
        A(f"s_cbranch_scc1 {l}")
        A(f"s_mul_i32 {sT[0]}, {sW}, 28672")
        A(f"s_add_u32 {sT[0]}, {sT[0]}, {QKVW}")
        A(f"v_lshrrev_b32 {vT[0]}, 5, {vL}")
        A(f"v_lshlrev_b32 {vT[0]}, 8, {vT[0]}")
        A(f"v_add3_u32 {vT[0]}, {vT[0]}, {vTQ}, {sT[0]}")
        A.lines(self.colsum(vT[0], lambda ks: ks * 1024, 512, 208, 176, 224))
        A(f"s_lshl_b32 {sT[0]}, {sW}, 7")
        A(f"s_add_u32 {sT[0]}, {sT[0]}, {QSCR}")
        A(f"v_lshrrev_b32 {vT[0]}, 5, {vL}")
        A(f"v_lshlrev_b32 {vT[0]}, 4, {vT[0]}")
        A(f"v_add_u32 {vT[0]}, {sT[0]}, {vT[0]}")
        A("s_mov_b32 s80, 1")
        A("s_mov_b32 s81, 1")
        A(f"s_mov_b64 exec, {sEX}")
        for i in range(4):
            A(f"ds_write_b128 {vT[0]}, {vr(208+4*i)} offset:{32*i}")
        A("s_mov_b64 exec, -1")
        A.join()
        A(f"{l}:")

    def qkv_main(self, layer0):
        A = self.A
        vA = vT[2]
        A(f"v_lshrrev_b32 {vA}, 5, {vL}")
        A(f"v_lshlrev_b32 {vA}, {9 if layer0 else 8}, {vA}")
        A(f"s_mov_b32 {sT[0]}, {QKVW}")
        A(f"v_add3_u32 {vA}, {vA}, {vTQ}, {sT[0]}")
        vA2 = vT[1]
        A(f"v_add_u32 {vA2}, 57344, {vA}")
        second = 256 if layer0 else 512
        seq = [(ks, p) for ks in range(28) for p in range(3)]
        def rd(i):
            ks, p = seq[i]
            if p < 2:
                return self.tr(("v", 176 + 4 * (i % 8)), vA, p * 28672 + ks * 1024, second)
            return self.tr(("v", 176 + 4 * (i % 8)), vA2, ks * 1024, second)
        def mm(i):
            ks, p = seq[i]
            acc = 128 + 16 * p
            w, x = vr(176 + 4 * (i % 8)), vr(16 + 4 * ks)
            a, b = (w, x) if p < 2 else (x, w)
            return f"v_mfma_f32_32x32x16_bf16 {vr(acc,16)}, {a}, {b}, {vr(acc,16) if ks else '0'}"
        D = 6
        s1, s2 = "v208", "v209"
        def dots(ks):
            L = []
            for j in range(4):
                r = f"v{16+4*ks+j}"
                L.append(f"v_dot2_f32_bf16 {s1}, {r}, {sONES}, {s1}")
                L.append(f"v_dot2_f32_bf16 {s2}, {r}, {r}, {s2}")
            return L
        if layer0:
            A(f"v_mov_b32 {s1}, 0")
            A(f"v_mov_b32 {s2}, 0")
        for i in range(D):
            A.lines(rd(i))
        for i in range(84):
            ks, p = seq[i]
            if layer0 and ks == 14 and p == 0:
                A("@wait_tag x1")
                A.lines(self.xreads(1))
            A(mm(i))
            if i + D < 84:
                A.lines(rd(i + D))
            if layer0:
                A.lines(dots(ks)[3 * p:3 * p + 3])
        if layer0:
            A(f"v_mov_b32 {vT[0]}, {s1}")
            A(f"v_permlane32_swap_b32 {vT[0]}, {s1}")
            A(f"v_add_f32 {s1}, {s1}, {vT[0]}")
            A(f"v_mov_b32 {vT[0]}, {s2}")
            A(f"v_permlane32_swap_b32 {vT[0]}, {s2}")
            A(f"v_add_f32 {s2}, {s2}, {vT[0]}")

    def xdma(self, rnd):
        d, t = vT[3], vT[5]
        L = [f"v_lshrrev_b32 {d}, 2, {vL}", f"v_mul_u32_u24 {d}, 896, {d}",
             f"v_lshrrev_b32 {t}, 4, {vL}", f"v_xor_b32 {t}, {t}, {vL}", f"v_and_b32 {t}, 3, {t}",
             f"v_lshlrev_b32 {t}, 4, {t}", f"v_add_u32 {d}, {d}, {t}",
             f"s_mul_i32 {sT[2]}, {sQTB}, {32*896}", f"s_mul_i32 m0, {sW}, 14336"]
        for q in range(14):
            seg, rh = 7 * rnd + (q >> 1), q & 1
            L += [f"s_add_u32 {sT[3]}, {sT[2]}, {rh*16*896 + seg*64}"]
            if q:
                L += ["s_add_u32 m0, m0, 1024"]
            L += [f"buffer_load_dwordx4 {d}, {sX}, {sT[3]} offen lds @x{rnd}"]
        return L

    def xreads(self, rnd):
        e, o, t = "v254", "v255", vT[5]
        L = []
        if rnd == 0:
            L += [f"v_and_b32 {e}, 31, {vL}", f"v_lshlrev_b32 {e}, 6, {e}", f"s_mul_i32 {sT[2]}, {sW}, 14336",
                  f"v_add_u32 {e}, {sT[2]}, {e}",
                  f"v_bfe_u32 {t}, {vL}, 2, 2", f"v_lshrrev_b32 {o}, 5, {vL}", f"v_xor_b32 {t}, {t}, {o}",
                  f"v_xor_b32 {o}, 2, {t}", f"v_lshlrev_b32 {o}, 4, {o}", f"v_add_u32 {o}, {o}, {e}",
                  f"v_lshlrev_b32 {t}, 4, {t}", f"v_add_u32 {e}, {e}, {t}"]
        for k in range(14):
            ks = 14 * rnd + k
            L.append(f"ds_read_b128 {vr(16+4*ks)}, {e if k % 2 == 0 else o} offset:{(k >> 1)*2048}")
        return L

    def resid_load(self):
        A = self.A
        d, t = vT[0], vT[1]
        A(f"v_and_b32 {d}, 31, {vL}")
        A(f"v_mul_u32_u24 {d}, 896, {d}")
        A(f"v_lshrrev_b32 {t}, 5, {vL}")
        A(f"v_lshlrev_b32 {t}, 3, {t}")
        A(f"v_add_u32 {d}, {d}, {t}")
        A(f"s_mul_i32 {sT[2]}, {sTB32}, {32*896}")
        A(f"s_lshl_b32 {sT[3]}, {sFT}, 7")
        A(f"s_add_u32 {sT[2]}, {sT[2]}, {sT[3]}")
        A(f"s_lshl_b32 {sT[3]}, {sKH}, 6")
        A(f"s_add_u32 {sT[2]}, {sT[2]}, {sT[3]}")
        for i in range(4):
            A(f"buffer_load_dwordx2 {vr(240+2*i,2)}, {d}, {sX}, {sT[2]} offen offset:{16*i}")

    def resid_unpack(self):
        A = self.A
        for i in range(8):
            A(f"v_lshlrev_b32 {vT[0]}, 16, v{240+i}")
            A(f"v_and_b32 {vT[1]}, 0xffff0000, v{240+i}")
            A(f"v_accvgpr_write_b32 a{aRES+2*i}, {vT[0]}")
            A(f"v_accvgpr_write_b32 a{aRES+2*i+1}, {vT[1]}")

    def norm_out(self, val, off):
        n, t = vT[0], vT[1]
        L = [f"v_mul_f32 {n}, v{val}, v{val}", f"v_mul_f32 {t}, v{val+1}, v{val+1}"]
        for i in range(2, 16):
            L.append(f"v_fmac_f32 {n if i % 2 == 0 else t}, v{val+i}, v{val+i}")
        L += [f"v_add_f32 {n}, {n}, {t}", f"v_mov_b32 {t}, {n}", f"v_permlane32_swap_b32 {n}, {t}", f"v_add_f32 {n}, {n}, {t}"]
        for r in (8, 4, 2, 1):
            L.append(f"v_max_f32_dpp {n}, {n}, {n} row_ror:{r} row_mask:0xf bank_mask:0xf")
        L += [f"s_lshl_b32 {sT[5]}, {sQH}, 9", f"s_lshl_b32 {sT[6]}, {sQTB}, 3", f"s_add_u32 {sT[5]}, {sT[5]}, {sT[6]}",
              f"s_add_u32 {sT[5]}, {sT[5]}, {sLB}", f"s_add_u32 {sT[5]}, {sT[5]}, {off}",
              f"v_lshrrev_b32 {t}, 2, {vL}", "s_mov_b64 exec, 0x10001",
              f"buffer_store_dword {n}, {t}, {sWS}, {sT[5]} offen sc1", "s_mov_b64 exec, -1"]
        return L

    def qkv_epilogue(self):
        A = self.A
        m, R, var = "v210", "v211", "v212"
        A.lines(self.stats_fin("v208", "v209", m, var))
        A(f"v_add_f32 {var}, {sC[1]}, {var}")
        A(f"v_rsq_f32 {R}, {var}")
        nrm, RQ, nrq = "v213", "v214", "v215"
        A(f"v_mul_f32 {nrm}, {R}, {m}")
        A(f"v_cndmask_b32 {vT[0]}, {R}, {nrm}, {sHI}")
        A(f"s_lshl_b32 {sT[0]}, {sW}, 8")
        A(f"s_add_u32 {sT[0]}, {sT[0]}, {QSCR + 512}")
        A(f"v_add_u32 {vT[1]}, {sT[0]}, {vL4}")
        A(f"ds_write_b32 {vT[1]}, {vT[0]}")
        A(f"v_mul_f32 {RQ}, {sC[4]}, {R}")
        A(f"v_mul_f32 {nrq}, {RQ}, {m}")
        A("s_waitcnt lgkmcnt(0)")
        A("s_barrier")
        vh = vT[2]
        A(f"v_lshrrev_b32 {vh}, 5, {vL}")
        A(f"v_lshlrev_b32 {vh}, 4, {vh}")
        A(f"v_add_u32 {vT[3]}, {QSCR}, {vh}")
        for p in range(2):
            for i in range(4):
                A(f"ds_read_b128 {vr(16+16*p+4*i)}, {vT[3]} offset:{128*p+32*i}")
        A(f"v_add_u32 {vT[4]}, {sT[0]}, {vh}")
        for p in range(2):
            for i in range(4):
                A(f"ds_read_b128 {vr(48+16*p+4*i)}, {vT[4]} offset:{128*p+32*i}")
        A(f"v_and_b32 {vT[3]}, 31, {vL}")
        A(f"v_cmp_eq_u32 vcc, 28, {vT[3]}")
        A(f"v_lshlrev_b32 {vT[3]}, 2, {vT[3]}")
        A(f"v_add_u32 {vT[3]}, {QSCR + 256}, {vT[3]}")
        A(f"ds_read_b32 v80, {vT[3]}")
        A(f"v_cndmask_b32 v81, 0, 1.0, vcc")
        A(f"s_lshl_b32 {sT[2]}, {sQH}, 6")
        A(f"s_add_u32 {sT[2]}, {sT[2]}, {sQTB}")
        A(f"s_lshl_b32 {sT[3]}, {sT[2]}, 12")
        A(f"s_add_u32 {sT[3]}, {sT[3]}, {sLB}")
        A(f"s_add_u32 {sT[3]}, {sT[3]}, {KV_OFF}")
        A(f"s_lshl_b32 {sT[2]}, {sT[2]}, 11")
        A(f"s_add_u32 {sT[2]}, {sT[2]}, {sLB}")
        for i in range(16):
            A(f"v_mul_f32 v{16+i}, v{16+i}, {nrm}")
            A(f"v_fma_f32 v{128+i}, v{128+i}, {R}, -v{16+i}")
        for i in range(12, 16):
            A(f"v_cndmask_b32 v{128+i}, v{128+i}, 0, {sHI}")
        A.lines(self.norm_out(128, KN_OFF))
        for i in range(12, 15):
            A(f"v_cndmask_b32 v{128+i}, v{128+i}, 1.0, {sHI}")
        A.lines(self.pack_store(128, 88, sT[3], 0))
        for i in range(16):
            A(f"v_mul_f32 v{64+i}, v{64+i}, v80")
            A(f"v_fma_f32 v{160+i}, v{160+i}, v{48+i}, -v{64+i}")
            A(f"v_cndmask_b32 v{160+i}, v{160+i}, v81, {sPADM}")
        A.lines(self.pack_store(160, 96, sT[3], 2048))
        for i in range(16):
            A(f"v_mul_f32 v{32+i}, v{32+i}, {nrq}")
            A(f"v_fma_f32 v{144+i}, v{144+i}, {RQ}, -v{32+i}")
        for i in range(12, 16):
            A(f"v_cndmask_b32 v{144+i}, v{144+i}, 0, {sHI}")
        A.lines(self.pack_store(144, 104, sT[2], 0))
        A.lines(self.norm_out(144, QN_OFF))

    def qkv_phase(self):
        A = self.A
        A(f"s_cmp_lg_u32 {sLAYER}, 0")
        A("s_cbranch_scc1 L_qkv1")
        A.lines(self.xdma(0))
        A.lines(self.dma_qkvw())
        A("@wait_tag x0")
        A.lines(self.xreads(0))
        A("s_waitcnt lgkmcnt(0)")
        A.lines(self.xdma(1))
        self.resid_load()
        A("@wait_tag wq")
        A("s_barrier")
        save = list(A.vm)
        self.qkv_colsum_nojoin(save)
        self.qkv_main(True)
        self.resid_unpack()
        A.join()
        A("s_branch L_qkv_epi")
        A("L_qkv1:")
        A("s_waitcnt vmcnt(0)")
        A("s_barrier")
        self.qkv_colsum()
        self.ts("qkv_prewait")
        self.poll_lines(6, [f"s_lshl_b32 {sT[2]}, {sAH}, 1"], [f"s_mov_b64 {sPM}, 0x7f7f"], bias=0)
        self.ts("qkv_polled")
        A.lines(self.stats_loads(LB0 + SO_OFF, sQTB, 224))
        A.lines(self.frag_loads(lambda i: vr(16 + 4 * i),
                                [f"s_mul_i32 {sT[3]}, {sQTB}, 28672", f"s_add_u32 {sT[3]}, {sT[3]}, {LB0 + XO_OFF}"], 28))
        A.lines(self.stats_sum(224, "v208", "v209"))
        self.qkv_main(False)
        A.join()
        A("L_qkv_epi:")
        self.ts("qkv_main")
        self.qkv_epilogue()
        self.ts("qkv_epi")
        self.signal(0)
        self.ts("qkv_sig")
        l = self.lab("pf")
        A(f"s_cmp_eq_u32 {sACT}, 0")
        A(f"s_cbranch_scc1 {l}")
        A.lines(self.dma_tile64(sWO, 896, [f"s_lshl_b32 {sT[3]}, {sFT}, 7"], LA, vDM))
        A.lines(self.dma_tile64(sW1, 896, [f"s_lshl_b32 {sT[3]}, {sFT}, 7"], LBB, vDM))
        A.settle()
        A.vm = []
        A(f"{l}:")
        self.phase_end("qkv")

    def qkv_colsum_nojoin(self, save):
        A = self.A
        A.vm = []
        self.qkv_colsum()
        A.vm = save

    def attention(self):
        A = self.A
        l = self.lab("initw")
        A(f"s_cmp_lg_u32 {sLAYER}, 0")
        A(f"s_cbranch_scc1 {l}")
        self.poll([f"v_mov_b32 {vT[0]}, {vL4}"], [f"s_mov_b64 {sPM}, -1"], srd=sDBG, eq=4)
        A(f"{l}:")
        self.poll_simple(0, sAH, 16)
        self.ts("att_polled")
        Q, S, P, O = 16, 48, 80, 96
        KV = lambda kt, j: ar(16 * (kt % 4) + 4 * j)
        sKV = sT[7]
        A(f"s_lshl_b32 {sT[2]}, {sAH}, 9")
        A(f"s_add_u32 {sT[2]}, {sT[2]}, {sLB}")
        A(f"s_add_u32 {sT[4]}, {sT[2]}, {KN_OFF}")
        A(f"v_lshlrev_b32 {vT[0]}, 3, {vL}")
        A(f"buffer_load_dwordx2 v[160:161], {vT[0]}, {sWS}, {sT[4]} offen sc1")
        A(f"s_lshl_b32 {sT[4]}, {sAQB}, 5")
        A(f"s_add_u32 {sT[4]}, {sT[4]}, {sT[2]}")
        A(f"s_add_u32 {sT[4]}, {sT[4]}, {QN_OFF}")
        A(f"v_and_b32 {vT[1]}, 28, {vL4}")
        A(f"buffer_load_dword v162, {vT[1]}, {sWS}, {sT[4]} offen sc1")
        A(f"s_lshl_b32 {sKV}, {sAH}, 6")
        A(f"s_lshl_b32 {sT[2]}, {sW}, 4")
        A(f"s_add_u32 {sKV}, {sKV}, {sT[2]}")
        A(f"s_lshl_b32 {sKV}, {sKV}, 12")
        A(f"s_add_u32 {sKV}, {sKV}, {sLB}")
        A(f"s_add_u32 {sKV}, {sKV}, {KV_OFF}")
        A(f"s_mov_b32 {sT[6]}, {sKV}")
        def kvload(kt, j):
            L = []
            if j == 0 and kt > 0:
                L.append(f"s_add_u32 {sKV}, {sKV}, 4096")
            L.append(f"buffer_load_dwordx4 {KV(kt, j)}, {vL16}, {sWS}, {sKV} offen offset:{1024*j} sc1")
            return L
        A.lines(kvload(0, 0) + kvload(0, 1))
        A(f"s_lshl_b32 {sT[2]}, {sAH}, 6")
        A(f"s_lshl_b32 {sT[3]}, {sAQB}, 2")
        A(f"s_add_u32 {sT[2]}, {sT[2]}, {sT[3]}")
        for j in range(4):
            A(f"s_add_u32 {sT[3]}, {sW}, {j}")
            A(f"s_and_b32 {sT[3]}, {sT[3]}, 3")
            A(f"s_add_u32 {sT[3]}, {sT[3]}, {sT[2]}")
            A(f"s_lshl_b32 {sT[3]}, {sT[3]}, 11")
            A(f"s_add_u32 {sT[3]}, {sT[3]}, {sLB}")
            for k in range(2):
                A(f"buffer_load_dwordx4 {vr(Q+8*j+4*k)}, {vL16}, {sWS}, {sT[3]} offen offset:{1024*k} sc1")
        A.lines(kvload(0, 2) + kvload(0, 3))
        for kt in (1, 2):
            for j in range(4):
                A.lines(kvload(kt, j))
        for i in range(64):
            A(f"v_mov_b32 v{O+i}, 0")
        A("v_max_f32 v160, v160, v161")
        for r in (8, 4, 2, 1):
            A(f"v_max_f32_dpp v160, v160, v160 row_ror:{r} row_mask:0xf bank_mask:0xf")
        for r in (4, 2, 1):
            A(f"v_max_f32_dpp v162, v162, v162 row_ror:{r} row_mask:0xf bank_mask:0xf")
        A("v_mov_b32 v161, v160")
        A("v_permlane16_swap_b32 v160, v161")
        A("v_max_f32 v160, v160, v161")
        A("v_mov_b32 v161, v160")
        A("v_permlane32_swap_b32 v160, v161")
        A("v_max_f32 v160, v160, v161")
        A("v_mul_f32 v160, v160, v162")
        A(f"v_cmp_nge_f32 vcc, {sC[5]}, v160")
        lf = self.lab("fast")
        if not self.force_fallback:
            A.settle()
            A(f"s_cbranch_vccz {lf}")
        saved = (list(A.vm), list(A.lg))
        self.att_fallback(Q, S)
        A.vm, A.lg = saved
        A(f"{lf}:")
        def smm(u, k):
            kt, j = divmod(u, 4)
            s = vr(S + 16 * (u % 2), 16)
            return f"v_mfma_f32_32x32x16_bf16 {s}, {KV(kt, k)}, {vr(Q+8*j+4*k)}, {s if k else '0'}"
        def pv(u, k):
            kt, j = divmod(u, 4)
            o = vr(O + 16 * j, 16)
            return f"v_mfma_f32_32x32x16_bf16 {o}, {KV(kt, 2+k)}, {vr(P+4*k)}, {o}"
        def ex(u, g):
            s = S + 16 * (u % 2)
            L = [f"v_exp_f32 v{s+4*g+i}, v{s+4*g+i}" for i in range(4)]
            L += [f"v_cvt_pk_bf16_f32 v{P+2*g+i}, v{s+4*g+2*i}, v{s+4*g+2*i+1}" for i in range(2)]
            return L
        A(smm(0, 0))
        A(smm(0, 1))
        for u in range(64):
            kt, j = divmod(u, 4)
            if u + 1 < 64:
                A(smm(u + 1, 0))
            A.lines(ex(u, 0))
            if u + 1 < 64:
                A(smm(u + 1, 1))
            A.lines(ex(u, 1))
            if u > 0:
                A(pv(u - 1, 1))
            if kt + 3 < 16:
                A.lines(kvload(kt + 3, j))
            A.lines(ex(u, 2))
            A(pv(u, 0))
            A.lines(ex(u, 3))
        A(pv(63, 1))
        self.ts("att_main")
        for j in (1, 2, 3):
            A(f"s_add_u32 {sT[2]}, {sW}, {j}")
            A(f"s_and_b32 {sT[2]}, {sT[2]}, 3")
            A(f"s_mul_i32 {sT[2]}, {sT[2]}, 12288")
            A(f"s_add_u32 {sT[2]}, {sT[2]}, {LC + (j-1)*4096}")
            A(f"v_add_u32 {vT[j-1]}, {sT[2]}, {vL16}")
            for i in range(4):
                A(f"ds_write_b128 {vT[j-1]}, {vr(O+16*j+4*i)} offset:{1024*i}")
        A(f"s_mul_i32 {sT[2]}, {sW}, 12288")
        A(f"s_add_u32 {sT[2]}, {sT[2]}, {LC}")
        A(f"v_add_u32 {vT[3]}, {sT[2]}, {vL16}")
        A("s_waitcnt lgkmcnt(0)")
        A("s_barrier")
        for j in range(3):
            for i in range(4):
                A(f"ds_read_b128 {vr(160+16*j+4*i)}, {vT[3]} offset:{4096*j+1024*i}")
        for j in range(3):
            for i in range(16):
                A(f"v_add_f32 v{O+i}, v{O+i}, v{160+16*j+i}")
        A(f"v_mov_b32 {vT[0]}, v{O+12}")
        A(f"v_mov_b32 {vT[1]}, v{O+12}")
        A(f"v_permlane32_swap_b32 {vT[0]}, {vT[1]}")
        A(f"v_rcp_f32 {vT[1]}, {vT[1]}")
        A(f"s_lshl_b32 {sT[2]}, {sAQB}, 2")
        A(f"s_add_u32 {sT[2]}, {sT[2]}, {sW}")
        A(f"s_lshl_b32 {sT[2]}, {sT[2]}, 15")
        A(f"s_lshl_b32 {sT[3]}, {sAH}, 11")
        A(f"s_add_u32 {sT[2]}, {sT[2]}, {sT[3]}")
        A(f"s_add_u32 {sT[2]}, {sT[2]}, {sLB}")
        A(f"s_add_u32 {sT[2]}, {sT[2]}, {O_OFF}")
        for i in range(16):
            A(f"v_mul_f32 v{O+i}, v{O+i}, {vT[1]}")
        for i in range(12, 16):
            A(f"v_cndmask_b32 v{O+i}, v{O+i}, 0, {sHI}")
        A.lines(self.pack_store(O, 16, sT[2], 0))
        self.ts("att_epi")
        self.signal(1)
        self.ts("att_sig")
        self.phase_end("att")

    def att_fallback(self, Q, S):
        A = self.A
        A.join()
        M = 164
        for j in range(4):
            A(f"v_mov_b32 v{M+j}, 0xff800000")
        A(f"s_mov_b32 {sT[5]}, 0")
        A(f"s_mov_b32 {sT[4]}, {sT[6]}")
        A.settle()
        l = self.lab("fb")
        A(f"{l}:")
        A(f"buffer_load_dwordx4 v[168:171], {vL16}, {sWS}, {sT[4]} offen sc1")
        A(f"buffer_load_dwordx4 v[172:175], {vL16}, {sWS}, {sT[4]} offen offset:1024 sc1")
        for j in range(4):
            s = vr(S, 16)
            A(f"v_mfma_f32_32x32x16_bf16 {s}, v[168:171], {vr(Q+8*j)}, 0")
            A(f"v_mfma_f32_32x32x16_bf16 {s}, v[172:175], {vr(Q+8*j+4)}, {s}")
            for i in range(8):
                A(f"v_max3_f32 v{M+j}, v{M+j}, v{S+2*i}, v{S+2*i+1}")
        A(f"s_add_u32 {sT[4]}, {sT[4]}, 4096")
        A(f"s_add_u32 {sT[5]}, {sT[5]}, 1")
        A(f"s_cmp_lt_u32 {sT[5]}, 16")
        A.join()
        A(f"s_cbranch_scc1 {l}")
        for j in range(4):
            A(f"v_mov_b32 {vT[0]}, v{M+j}")
            A(f"v_permlane32_swap_b32 {vT[0]}, v{M+j}")
            A(f"v_max_f32 v{M+j}, v{M+j}, {vT[0]}")
            A(f"s_add_u32 {sT[2]}, {sW}, {j}")
            A(f"s_and_b32 {sT[2]}, {sT[2]}, 3")
            A(f"s_lshl_b32 {sT[2]}, {sT[2]}, 10")
            A(f"s_add_u32 {sT[2]}, {sT[2]}, {LC}")
            A(f"v_add_u32 v{168+j}, {sT[2]}, {vL4}")
            A(f"s_lshl_b32 {sT[3]}, {sW}, 8")
            A(f"v_add_u32 {vT[1]}, {sT[3]}, v{168+j}")
            A(f"ds_write_b32 {vT[1]}, v{M+j}")
        A("s_waitcnt lgkmcnt(0)")
        A("s_barrier")
        for j in range(4):
            for w in range(4):
                A(f"ds_read_b32 v{S+4*j+w}, v{168+j} offset:{256*w}")
        for j in range(4):
            b = S + 4 * j
            A(f"v_max3_f32 v{b}, v{b}, v{b+1}, v{b+2}")
            A(f"v_max_f32 v{b}, v{b}, v{b+3}")
            A(f"v_sub_f32 v{b}, 0, v{b}")
            A(f"v_and_b32 v{b+1}, 0xffff0000, v{b}")
            A(f"v_sub_f32 v{b}, v{b}, v{b+1}")
            A(f"v_and_b32 v{b+2}, 0xffff0000, v{b}")
            A(f"v_sub_f32 v{b}, v{b}, v{b+2}")
            A(f"v_lshrrev_b32 v{b}, 16, v{b}")
            A(f"v_lshrrev_b32 v{b+1}, 16, v{b+1}")
            A(f"v_or_b32 v{b+1}, v{b+1}, v{b+2}")
            A(f"v_cndmask_b32 v{Q+8*j+6}, v{Q+8*j+6}, v{b+1}, {sHI}")
            A(f"v_cndmask_b32 v{Q+8*j+7}, v{Q+8*j+7}, v{b}, {sHI}")
        A.join()
        A("s_barrier")

    def small_pre(self, slot, nks, k4_of):
        A = self.A
        a0, a1 = vT[0], vT[1]
        khstride = k4_of(nks) * 512
        A(f"s_mul_i32 {sT[2]}, {sKH}, {khstride + 256}")
        A(f"s_add_u32 {sT[2]}, {sT[2]}, {slot}")
        A(f"v_add_u32 {a0}, {sT[2]}, {vTR}")
        A(f"v_xor_b32 {a1}, 256, {a0}")
        for k in range(nks):
            for j in range(2):
                A.lines(self.tr(("a", 8 * k + 4 * j), a1 if j else a0, k4_of(k) * 512, 1024))

    def small_main(self, nks):
        A = self.A
        for k in range(nks):
            for j in (1, 0):
                acc = vr(128 + 16 * j, 16)
                A(f"v_mfma_f32_32x32x16_bf16 {acc}, {ar(8*k+4*j)}, {vr(16+4*k)}, {acc if k else '0'}")
        A(f"s_lshl_b32 {sT[2]}, {sW}, 12")
        A(f"s_add_u32 {sT[2]}, {sT[2]}, {LC}")
        A(f"v_add_u32 {vT[0]}, {sT[2]}, {vL16}")
        A(f"v_xor_b32 {vT[1]}, 8192, {vT[0]}")
        for i in range(4):
            A(f"ds_write_b128 {vT[0]}, {vr(144+4*i)} offset:{1024*i}")
        A("s_waitcnt lgkmcnt(0)")
        A("s_barrier")
        for i in range(4):
            A(f"ds_read_b128 {vr(160+4*i)}, {vT[1]} offset:{1024*i}")
        for i in range(16):
            A(f"v_add_f32 v{128+i}, v{128+i}, v{160+i}")

    def wo_phase(self):
        A = self.A
        self.small_pre(LA, 16, lambda k: 7 * (k >> 1) + 4 * (k & 1))
        self.ts("wo_pre")
        A(f"s_lshr_b32 {sT[7]}, {sTB64}, 1")
        self.poll_simple(1, sT[7], 16)
        self.ts("wo_polled")
        A.lines(self.frag_loads(lambda i: vr(16 + 4 * i),
                                [f"s_lshl_b32 {sT[3]}, {sTB32}, 15", f"s_lshl_b32 {sT[4]}, {sKH}, 14",
                                 f"s_add_u32 {sT[3]}, {sT[3]}, {sT[4]}", f"s_add_u32 {sT[3]}, {sT[3]}, {sLB}",
                                 f"s_add_u32 {sT[3]}, {sT[3]}, {O_OFF}"], 16))
        A.lines(self.dma_tile64(sW2, 896, [f"s_lshl_b32 {sT[3]}, {sFT}, 7"], LA, vDM))
        self.small_main(16)
        self.ts("wo_main")
        for i in range(16):
            A(f"v_accvgpr_read_b32 v{160+i}, a{aRES+i}")
        for i in range(16):
            A(f"v_add_f32 v{128+i}, v{128+i}, v{160+i}")
        A.lines(self.tile_off(XM_OFF, sT[2]))
        A.lines(self.pack_store(128, 16, sT[2]))
        A.lines(self.stats_out(128, SM_OFF, 24))
        for i in range(16):
            A(f"v_accvgpr_write_b32 a{aRES+i}, v{128+i}")
        self.ts("wo_epi")
        self.signal(2)
        self.ts("wo_sig")
        self.phase_end("wo")

    def act_base(self, off):
        return [f"s_mul_i32 {sT[3]}, {sTB32}, 28672", f"s_mul_i32 {sT[4]}, {sKH}, 14336",
                f"s_add_u32 {sT[3]}, {sT[3]}, {sT[4]}", f"s_add_u32 {sT[3]}, {sT[3]}, {sLB}",
                f"s_add_u32 {sT[3]}, {sT[3]}, {off}"]

    def w1_phase(self):
        A = self.A
        self.small_pre(LBB, 14, lambda k: 4 * k)
        A(f"s_lshl_b32 {sT[2]}, {sKH}, 8")
        A(f"s_add_u32 {sT[2]}, {sT[2]}, {LBB}")
        A(f"v_add_u32 {vT[2]}, {sT[2]}, {vTR}")
        A.lines(self.colsum(vT[2], lambda ks: ks * 2048, 1024, 208, 176, 224))
        self.ts("w1_pre")
        self.poll_simple(2, sTB64, 7)
        self.ts("w1_polled")
        A(f"s_add_u32 {sT[7]}, {sLB}, {SM_OFF}")
        A.lines(self.stats_loads(sT[7], sTB32, 224))
        A.lines(self.frag_loads(lambda i: vr(16 + 4 * i), self.act_base(XM_OFF), 14))
        A.lines(self.dm_lane(vT[4], 3584))
        A.lines(self.dma_tile64(sW3, 3584, [f"s_lshl_b32 {sT[3]}, {sF3}, 8"], LBB, vT[4]))
        s1, s2, var, R, ka, kb, iR = "v240", "v241", "v242", "v243", "v244", "v245", "v246"
        A.lines(self.stats_sum(224, s1, s2))
        A.lines(self.stats_fin(s1, s2, vM, var))
        A(f"v_add_f32 {s1}, {sC[1]}, {var}")
        A(f"v_rsq_f32 {vR1}, {s1}")
        A(f"v_mul_f32 {var}, {var}, {vR1}")
        A(f"v_fma_f32 {var}, {var}, {vR1}, {sC[1]}")
        A(f"v_rsq_f32 {R}, {var}")
        A(f"v_mul_f32 {R}, {R}, {vR1}")
        A.lines(self.gelu_consts(R, ka, kb, iR))
        self.small_main(14)
        self.ts("w1_main")
        A.lines(self.gelu(128, 208, vM, ka, kb, iR, 160))
        A.lines(self.tile_off(H_OFF, sT[2]))
        A.lines(self.pack_store(128, 16, sT[2]))
        self.ts("w1_epi")
        self.signal(3)
        self.ts("w1_sig")
        self.phase_end("w1")

    def w2_phase(self):
        A = self.A
        self.small_pre(LA, 14, lambda k: 4 * k)
        for gi in range(2):
            d, t = f"v{240+gi}", vT[2]
            A(f"s_add_u32 {sT[2]}, {sKH}, 1")
            if gi == 0:
                A(f"s_sub_u32 {sT[2]}, 0, {sT[2]}")
            A(f"s_lshl_b32 {sT[3]}, {sTB32}, 5")
            A(f"s_add_u32 {sT[2]}, {sT[2]}, {sT[3]}")
            A(f"v_and_b32 {t}, 31, {vL}")
            A(f"v_add_u32 {t}, {sT[2]}, {t}")
            A(f"v_cmp_gt_u32 vcc, 0x800, {t}")
            A(f"v_lshrrev_b32 {d}, 5, {t}")
            A(f"v_mul_u32_u24 {d}, 28672, {d}")
            A(f"v_and_b32 {t}, 31, {t}")
            A(f"v_lshlrev_b32 {t}, 4, {t}")
            A(f"v_add_u32 {d}, {d}, {t}")
            A(f"v_lshrrev_b32 {t}, 5, {vL}")
            A(f"v_lshlrev_b32 {t}, 9, {t}")
            A(f"v_add_u32 {d}, {d}, {t}")
            A(f"v_mov_b32 {t}, {OOB}")
            A(f"v_cndmask_b32 {d}, {t}, {d}, vcc")
        self.ts("w2_pre")
        self.poll_lines(3, [f"s_sub_u32 {sT[2]}, {sTB64}, 1"],
                        ["s_mov_b32 s86, 0x7f7f7f", f"s_cmp_eq_u32 {sTB64}, 0", f"s_cselect_b32 s86, 0x7f7f00, s86",
                         f"s_cmp_eq_u32 {sTB64}, 31", f"s_cselect_b32 s86, 0x7f7f, s86", "s_mov_b32 s87, 0"])
        self.ts("w2_polled")
        A(f"s_mul_i32 {sT[3]}, {sKH}, 14336")
        A(f"s_add_u32 {sT[3]}, {sT[3]}, {sLB}")
        A(f"s_add_u32 {sT[3]}, {sT[3]}, {H_OFF}")
        for k in range(14):
            if k and k % 4 == 0:
                A(f"s_add_u32 {sT[3]}, {sT[3]}, 4096")
            A(f"buffer_load_dwordx4 {vr(16+4*k)}, v{240 + k//7}, {sWS}, {sT[3]} offen offset:{(k%4)*1024} sc1")
        A.lines(self.dm_lane(vT[4], 3584))
        A.lines(self.dma_tile64(sW3, 3584, [f"s_lshl_b32 {sT[3]}, {sF3}, 8", f"s_add_u32 {sT[3]}, {sT[3]}, 128"], LA, vT[4]))
        for i in range(16):
            A(f"v_accvgpr_read_b32 v{208+i}, a{aRES+i}")
        for i in range(16):
            A(f"v_sub_f32 v{224+i}, v{208+i}, {vM}")
        self.small_main(14)
        self.ts("w2_main")
        for i in range(16):
            A(f"v_fmac_f32 v{128+i}, v{224+i}, {vR1}")
        A.lines(self.tile_off(X1_OFF, sT[2]))
        A.lines(self.pack_store(128, 16, sT[2]))
        A.lines(self.stats_out(128, S1_OFF, 24))
        for i in range(16):
            A(f"v_add_f32 v{208+i}, v{208+i}, v{128+i}")
            A(f"v_accvgpr_write_b32 a{aRES+i}, v{208+i}")
        self.ts("w2_epi")
        self.signal(4)
        self.ts("w2_sig")
        self.phase_end("w2")

    def w3_phase(self):
        A = self.A
        A(f"s_cmp_lt_u32 {sW}, 2")
        A(f"s_cselect_b32 {sT[2]}, {LBB}, {LA}")
        A(f"s_lshl_b32 {sT[3]}, {sNI}, 8")
        A(f"s_add_u32 {sT[2]}, {sT[2]}, {sT[3]}")
        A(f"v_add_u32 {vT[2]}, {sT[2]}, {vTR}")
        A.lines(self.colsum(vT[2], lambda ks: ks * 2048, 1024, 208, 176, 224))
        A(f"s_lshl_b32 {sT[0]}, {sW}, 7")
        A(f"s_add_u32 {sT[0]}, {sT[0]}, {W3SCR}")
        A(f"v_lshrrev_b32 v252, 5, {vL}")
        A(f"v_lshlrev_b32 v252, 4, v252")
        A(f"v_add_u32 {vT[0]}, {sT[0]}, v252")
        A(f"v_add_u32 v252, {W3SCR}, v252")
        A("s_mov_b32 s80, 1")
        A("s_mov_b32 s81, 1")
        A(f"s_mov_b64 exec, {sEX}")
        for i in range(4):
            A(f"ds_write_b128 {vT[0]}, {vr(208+4*i)} offset:{32*i}")
        A("s_mov_b64 exec, -1")
        self.ts("w3_pre")
        self.poll_lines(4, [f"s_lshl_b32 {sT[2]}, {sT128}, 1"], [f"s_mov_b64 {sPM}, 0x7f7f"])
        self.ts("w3_polled")
        sTB = sT[7]
        A(f"s_lshl_b32 {sTB}, {sT128}, 2")
        A(f"s_add_u32 {sTB}, {sTB}, {sW}")
        A(f"s_add_u32 {sT[6]}, {sLB}, {S1_OFF}")
        A.lines(self.stats_loads(sT[6], sTB, 224))
        A.lines(self.frag_loads(lambda i: vr(16 + 4 * i),
                                [f"s_mul_i32 {sT[3]}, {sTB}, 28672", f"s_add_u32 {sT[3]}, {sT[3]}, {sLB}",
                                 f"s_add_u32 {sT[3]}, {sT[3]}, {X1_OFF}"], 28))
        s1, s2, var, R, ka, kb, iR, m = "v240", "v241", "v242", "v243", "v244", "v245", "v246", "v247"
        A.lines(self.stats_sum(224, s1, s2))
        A.lines(self.stats_fin(s1, s2, m, var))
        A(f"v_add_f32 {var}, {sC[1]}, {var}")
        A(f"v_rsq_f32 {R}, {var}")
        A.lines(self.gelu_consts(R, ka, kb, iR))
        vB_, vA_ = "v250", "v251"
        A(f"v_add_u32 {vB_}, {LBB}, {vTR}")
        A(f"v_add_u32 {vA_}, {LA}, {vTR}")
        A(f"s_mul_i32 {sT[2]}, {sTB}, 114688")
        A(f"s_lshl_b32 {sT[3]}, {sF3}, 13")
        A(f"s_add_u32 {sT[2]}, {sT[2]}, {sT[3]}")
        A(f"s_add_u32 {sT[2]}, {sT[2]}, {sLB}")
        A(f"s_add_u32 {sT[2]}, {sT[2]}, {G_OFF}")
        seq = [(mt, ks) for mt in range(4) for ks in range(28)]
        def rd(i):
            mt, ks = seq[i]
            return self.tr(("v", 176 + 4 * (i % 8)), vB_ if mt < 2 else vA_, (mt & 1) * 256 + ks * 2048, 1024)
        def mm(i):
            mt, ks = seq[i]
            acc = vr(128 + 16 * (mt & 1), 16)
            return f"v_mfma_f32_32x32x16_bf16 {acc}, {vr(176+4*(i%8))}, {vr(16+4*ks)}, {acc if ks else '0'}"
        def epi(mt):
            acc = 128 + 16 * (mt & 1)
            L = [f"ds_read_b128 {vr(160+4*i)}, v252 offset:{128*mt+32*i}" for i in range(4)]
            L += self.gelu(acc, 160, m, ka, kb, iR, 208)
            if mt == 2:
                L.append(f"s_add_u32 {sT[2]}, {sT[2]}, 4096")
            L += self.pack_store(acc, 216, sT[2], (mt & 1) * 2048)
            return L
        D = 6
        for i in range(D):
            A.lines(rd(i))
        for mt in range(4):
            main = []
            for ks in range(28):
                i = mt * 28 + ks
                main.append([mm(i)] + (rd(i + D) if i + D < 112 else []))
            if mt:
                A.lines(interleave(main, epi(mt - 1), start=2, end=27))
            else:
                A.lines(interleave(main, []))
        self.ts("w3_main")
        A.lines(epi(3))
        self.ts("w3_epi")
        self.signal(5)
        self.ts("w3_sig")
        A.lines(self.w4_dma(range(20), True))
        self.phase_end("w3")

    def w4_dma(self, steps, first):
        L = []
        sG, sL = "s62", "s63"
        if first:
            L += [f"s_mul_i32 {sG}, {sW}, {448*896}", f"s_lshl_b32 {sT[3]}, {sFT}, 7", f"s_add_u32 {sG}, {sG}, {sT[3]}",
                  f"s_mul_i32 {sL}, {sW}, 40960"]
        for i in steps:
            for hf in range(2):
                L += [f"s_add_u32 {sT[3]}, {sG}, {(16*i + 8*hf)*896}", f"s_add_u32 m0, {sL}, {(i % 20)*2048 + hf*1024}",
                      f"buffer_load_dwordx4 {vDM}, {sW4}, {sT[3]} offen lds @w4_{i}"]
        return L

    def w4_phase(self):
        A = self.A
        A(f"s_lshr_b32 {sT[7]}, {sTB64}, 1")
        self.poll_simple(5, sT[7], 14)
        self.ts("w4_polled")
        A("s_waitcnt vmcnt(0)")
        sB = [sT[6], sT[7]]
        for jb in range(2):
            A(f"s_xor_b32 {sB[jb]}, {sTB32}, {jb}")
            A(f"s_mul_i32 {sB[jb]}, {sB[jb]}, 114688")
            A(f"s_mul_i32 {sT[4]}, {sW}, 28672")
            A(f"s_add_u32 {sB[jb]}, {sB[jb]}, {sT[4]}")
            A(f"s_add_u32 {sB[jb]}, {sB[jb]}, {sLB}")
            A(f"s_add_u32 {sB[jb]}, {sB[jb]}, {G_OFF}")
        def breg(i, jb):
            return vr(16 + 8 * i + 4 * jb) if i < 14 else ar(8 * (i - 14) + 4 * jb)
        def bload(i):
            L = []
            for jb in range(2):
                if i and i % 4 == 0:
                    L.append(f"s_add_u32 {sB[jb]}, {sB[jb]}, 4096")
                L.append(f"buffer_load_dwordx4 {breg(i, jb)}, {vL16}, {sWS}, {sB[jb]} offen offset:{(i%4)*1024} sc1")
            return L
        PB = 16
        for i in range(PB):
            A.lines(bload(i))
        a0, a1 = vT[0], vT[1]
        A(f"s_lshl_b32 {sT[2]}, {sKH}, 8")
        A(f"s_add_u32 {sT[2]}, {sT[2]}, s63")
        A(f"v_add_u32 {a0}, {sT[2]}, {vTR}")
        A(f"v_xor_b32 {a1}, 256, {a0}")
        def rd(i):
            L = []
            if i >= 20:
                L.append(f"@wait_tag w4_{i}")
            for ja in range(2):
                L += self.tr(("v", 192 + 8 * (i % 4) + 4 * ja), a1 if ja else a0, (i % 20) * 2048, 1024)
            return L
        D = 3
        for i in range(D):
            A.lines(rd(i))
        for i in range(28):
            mms = []
            for ja in range(2):
                for jb in range(2):
                    acc = vr(128 + 16 * (2 * ja + jb), 16)
                    mms.append(f"v_mfma_f32_32x32x16_bf16 {acc}, {vr(192+8*(i%4)+4*ja)}, {breg(i, jb)}, {acc if i else '0'}")
            fill = []
            if i + PB < 28:
                fill += bload(i + PB)
            if 1 <= i <= 8:
                fill += self.w4_dma([19 + i], False)
            if i + D < 28:
                fill += rd(i + D)
            A.lines(interleave(mms, fill))
        self.ts("w4_main")
        A("s_waitcnt lgkmcnt(0)")
        A("s_barrier")
        for j in (1, 2, 3):
            A(f"s_xor_b32 {sT[2]}, {sW}, {j}")
            A(f"s_mul_i32 {sT[2]}, {sT[2]}, 12288")
            A(f"s_add_u32 {sT[2]}, {sT[2]}, {LA + (j-1)*4096}")
            A(f"v_add_u32 {vT[j-1]}, {sT[2]}, {vL16}")
            for i in range(4):
                A(f"ds_write_b128 {vT[j-1]}, {vr(128+16*j+4*i)} offset:{1024*i}")
        A(f"s_mul_i32 {sT[2]}, {sW}, 12288")
        A(f"s_add_u32 {sT[2]}, {sT[2]}, {LA}")
        A(f"v_add_u32 {vT[3]}, {sT[2]}, {vL16}")
        for i in range(16):
            A(f"v_accvgpr_read_b32 v{64+i}, a{aRES+i}")
        for i in range(16):
            A(f"v_add_f32 v{128+i}, v{128+i}, v{64+i}")
        A("s_waitcnt lgkmcnt(0)")
        A("s_barrier")
        for j in range(3):
            for i in range(4):
                A(f"ds_read_b128 {vr(16+16*j+4*i)}, {vT[3]} offset:{4096*j+1024*i}")
        for j in range(3):
            for i in range(16):
                A(f"v_add_f32 v{128+i}, v{128+i}, v{16+16*j+i}")
        A.join()
        A(f"s_cmp_lg_u32 {sLAYER}, 0")
        A("s_cbranch_scc1 L_final")
        A.lines(self.tile_off(XO_OFF, sT[2]))
        A.lines(self.pack_store(128, 16, sT[2]))
        A.lines(self.stats_out(128, SO_OFF, 24))
        for i in range(16):
            A(f"v_accvgpr_write_b32 a{aRES+i}, v{128+i}")
        self.ts("w4_epi")
        self.signal(6)
        self.ts("w4_sig")

    def final_store(self):
        A = self.A
        A("L_final:")
        for d in range(8):
            A(f"v_cvt_pk_bf16_f32 v{16+d}, v{128+2*d}, v{128+2*d+1}")
        for b in (16, 20):
            A(f"v_permlane32_swap_b32 v{b}, v{b+2}")
            A(f"v_permlane32_swap_b32 v{b+1}, v{b+3}")
        d, t = vT[0], vT[1]
        A(f"v_and_b32 {d}, 31, {vL}")
        A(f"v_mul_u32_u24 {d}, 896, {d}")
        A(f"v_lshrrev_b32 {t}, 5, {vL}")
        A(f"v_lshlrev_b32 {t}, 4, {t}")
        A(f"v_add_u32 {d}, {d}, {t}")
        A(f"s_mul_i32 {sT[2]}, {sTB32}, {32*896}")
        A(f"s_lshl_b32 {sT[3]}, {sFT}, 7")
        A(f"s_add_u32 {sT[2]}, {sT[2]}, {sT[3]}")
        A(f"s_lshl_b32 {sT[3]}, {sKH}, 6")
        A(f"s_add_u32 {sT[2]}, {sT[2]}, {sT[3]}")
        A(f"buffer_store_dwordx4 v[16:19], {d}, {sOUT}, {sT[2]} offen")
        A(f"buffer_store_dwordx4 v[20:23], {d}, {sOUT}, {sT[2]} offen offset:32")
        self.ts("final")

    def build(self):
        A = self.A
        self.prologue()
        A("L_layer:")
        self.qkv_phase()
        self.attention()
        A(f"s_cmp_eq_u32 {sACT}, 0")
        A("s_cbranch_scc1 L_idle")
        self.wo_phase()
        self.w1_phase()
        self.w2_phase()
        self.w3_phase()
        self.w4_phase()
        A("s_branch L_next")
        A("L_idle:")
        A(f"s_cmp_lg_u32 {sLAYER}, 0")
        A("s_cbranch_scc1 L_finish")
        A("L_next:")
        self.phase_end("w4")
        if self.stop and self.stop[1] == 0:
            A("s_branch L_finish")
        self.ts_store()
        A(f"s_mov_b32 {sLAYER}, 1")
        A(f"s_mov_b32 {sLB}, {LB0 + LBSTR}")
        A.lines(self.dma_qkvw())
        A.settle()
        A.vm = []
        A("s_branch L_layer")
        self.final_store()
        A("L_finish:")
        self.ts_store()
        A("L_exit:")
        A("s_endpgm")
        head = open("cdna_kernels/%s.s.ref" % NAME).read().split("; Override launch")[0]
        return (head + "; Persistent fused kernel: 256 workgroups (one per CU), 4 waves x 512 registers.\n"
                "; @launch grid=(256,1,1) block=(256,1,1) lds=163840\n"
                '.amdgcn_target "amdgcn-amd-amdhsa--gfx950"\n.text\n'
                f".globl {NAME}_kernel\n.p2align 8\n.type {NAME}_kernel,@function\n{NAME}_kernel:\n"
                + A.text() +
                '.section .rodata,"a"\n.p2align 6\n'
                f".amdhsa_kernel {NAME}_kernel\n"
                "  .amdhsa_next_free_vgpr 512\n  .amdhsa_next_free_sgpr 102\n  .amdhsa_accum_offset 256\n"
                "  .amdhsa_group_segment_fixed_size 0\n  .amdhsa_kernarg_size 88\n  .amdhsa_user_sgpr_count 2\n"
                "  .amdhsa_user_sgpr_kernarg_segment_ptr 1\n  .amdhsa_system_sgpr_workgroup_id_x 1\n"
                ".end_amdhsa_kernel\n")


if __name__ == "__main__":
    import argparse, json
    ap = argparse.ArgumentParser()
    ap.add_argument("-o", default="k.s")
    ap.add_argument("--stop", default=None)
    ap.add_argument("--prof", action="store_true")
    ap.add_argument("--fb", action="store_true")
    a = ap.parse_args()
    stop = None
    if a.stop:
        n, l = a.stop.split(":")
        stop = (n, int(l))
    g = Gen(stop, a.prof, a.fb)
    open(a.o, "w").write(g.build())
    json.dump(g.tsnames, open(a.o + ".ts.json", "w"))
    print("nops inserted:", g.A.nnop, "lines:", len(g.A.out))
```

```python
import re

_RE_REG = re.compile(r'(?<![\w.])([vas])(\d+)(?![\w\[])|(?<![\w.])([vas])\[(\d+):(\d+)\]|(?<![\w.])(vcc|exec|m0)(?![\w])')
TRANS = ("v_exp_f32", "v_log_f32", "v_rcp_f32", "v_rsq_f32", "v_sqrt_f32", "v_sin_f32", "v_cos_f32")


def regs_of(op):
    out = []
    for m in _RE_REG.finditer(op):
        if m.group(1):
            out.append((m.group(1), int(m.group(2))))
        elif m.group(3):
            out += [(m.group(3), i) for i in range(int(m.group(4)), int(m.group(5)) + 1)]
        else:
            out.append((m.group(6), 0))
    return out


def split_ops(s):
    ops, depth, cur = [], 0, ""
    for ch in s:
        if ch == "[":
            depth += 1
        if ch == "]":
            depth -= 1
        if ch == "," and depth == 0:
            ops.append(cur.strip())
            cur = ""
        else:
            cur += ch
    if cur.strip():
        ops.append(cur.strip())
    return ops


class I:
    __slots__ = ("text", "op", "kind", "dst", "src", "srcC", "wide_store", "dpp", "lds_dma", "tag", "nstates")

    def __init__(self, text, tag=None):
        self.text = text
        self.tag = tag
        t = text.split(";")[0].strip()
        sp = t.split(None, 1)
        op = sp[0]
        self.op = op
        ops = split_ops(sp[1]) if len(sp) > 1 else []
        self.dst, self.src, self.srcC = [], [], []
        self.wide_store = False
        self.dpp = ("_dpp" in op) or ("row_ror" in t) or ("row_shr" in t) or ("quad_perm" in t) or ("row_bcast" in t)
        self.lds_dma = False
        self.nstates = 1
        R = regs_of
        if op.startswith("v_mfma"):
            self.kind = "mfma"
            self.dst = R(ops[0])
            self.src = R(ops[1]) + R(ops[2])
            self.srcC = R(ops[3])
        elif op.startswith("v_"):
            self.kind = "valu"
            if op.startswith("v_cmp"):
                self.dst = R(ops[0])
                self.src = sum((R(o) for o in ops[1:]), [])
            elif op.startswith("v_permlane"):
                self.dst = R(ops[0]) + R(ops[1])
                self.src = R(ops[0]) + R(ops[1])
                self.kind = "perm"
            elif op.startswith("v_readfirstlane") or op.startswith("v_readlane"):
                self.dst = R(ops[0])
                self.src = sum((R(o) for o in ops[1:]), [])
                self.kind = "rdlane"
            elif op.startswith("v_nop"):
                pass
            else:
                self.dst = R(ops[0])
                self.src = sum((R(o) for o in ops[1:]), [])
                if op.startswith(("v_fmac", "v_dot2c", "v_writelane", "v_pk_fmac")) or self.dpp:
                    self.src += self.dst
                if op.startswith("v_cndmask") and len(ops) == 3:
                    self.src.append(("vcc", 0))
                if op.split("_e32")[0].split("_e64")[0] in TRANS:
                    self.kind = "trans"
        elif op.startswith("buffer_load") or op.startswith("global_load"):
            self.kind = "vmem"
            if re.search(r"\blds\b", t):
                self.lds_dma = True
                self.src = sum((R(o) for o in ops), []) + [("m0", 0)]
            else:
                self.dst = R(ops[0])
                self.src = sum((R(o) for o in ops[1:]), [])
        elif op.startswith("buffer_store") or op.startswith("buffer_atomic") or op.startswith("global_store"):
            self.kind = "vmem"
            self.src = sum((R(o) for o in ops), [])
            if "x4" in op or "x3" in op:
                self.wide_store = R(ops[0])
            if op.startswith("buffer_atomic") and "sc0" in t:
                self.dst = R(ops[0])
        elif op.startswith("buffer_"):
            self.kind = "vmem"
        elif op.startswith("ds_read") or op.startswith("ds_bpermute") or op.startswith("ds_swizzle"):
            self.kind = "lds"
            self.dst = R(ops[0])
            self.src = sum((R(o) for o in ops[1:]), [])
        elif op.startswith("ds_"):
            self.kind = "lds"
            self.src = sum((R(o) for o in ops), [])
        elif op.startswith("s_load") or op.startswith("s_memtime") or op.startswith("s_memrealtime"):
            self.kind = "smem"
            self.dst = R(ops[0])
            self.src = sum((R(o) for o in ops[1:]), [])
        elif op == "s_nop":
            self.kind = "nop"
            self.nstates = int(ops[0], 0) + 1
        elif op == "s_waitcnt":
            self.kind = "wait"
        elif op.startswith("s_"):
            self.kind = "salu"
            if op.startswith(("s_cmp", "s_cbranch", "s_branch", "s_barrier", "s_endpgm", "s_sleep", "s_setprio", "s_bitcmp")):
                self.src = sum((R(o) for o in ops), [])
            else:
                self.dst = R(ops[0]) if ops else []
                self.src = sum((R(o) for o in ops[1:]), [])
                if "saveexec" in op:
                    self.dst = self.dst + [("exec", 0)]
        else:
            raise ValueError("unknown instruction: " + text)


class Asm:
    def __init__(self):
        self.out = []
        self.ins = []
        self.t = 0
        self.wr = {}
        self.cread = {}
        self.wstore = {}
        self.vm = []
        self.lg = []
        self.smem = False
        self.auto = True
        self.nnop = 0
        self.labels = {}

    def raw(self, s):
        self.out.append(s)
        self.ins.append(None)

    def comment(self, s):
        self.raw("    ; " + s)

    def label(self, name):
        self.labels[name] = len(self.out)
        self.raw(name + ":")

    def _emit(self, ins):
        self.out.append("    " + ins.text)
        self.ins.append(ins)
        self.t += ins.nstates

    def _need(self, ins):
        need = 0
        t = self.t

        def req(t0, n):
            nonlocal need
            have = t - t0 - 1
            if n - have > need:
                need = n - have
        k = ins.kind
        valu_like = k in ("valu", "trans", "perm", "rdlane")
        for r in ins.src + ins.srcC + (ins.dst if (valu_like or k in ("vmem", "lds")) else []):
            w = self.wr.get(r)
            if not w:
                continue
            t0, wk, extra = w
            is_src = (r in ins.src) or (r in ins.srcC)
            if wk == "mfma":
                if k == "mfma":
                    if r in ins.src:
                        req(t0, 12)
                    elif r in ins.srcC:
                        if tuple(ins.srcC) != extra:
                            req(t0, 10)
                else:
                    req(t0, 12)
            elif wk in ("valu", "trans", "perm") and is_src:
                if r[0] in ("v", "a"):
                    if k == "mfma":
                        req(t0, 2)
                    if k == "perm" or ins.dpp:
                        req(t0, 2)
                    if k == "rdlane":
                        req(t0, 1)
                    if wk == "trans" and valu_like:
                        req(t0, 1)
                    if extra == "dot" and valu_like and not ins.op.startswith("v_dot"):
                        req(t0, 3)
                    if extra == "dot" and k in ("vmem", "lds"):
                        req(t0, 3)
                else:
                    if valu_like:
                        req(t0, 2)
                    if k in ("vmem",):
                        req(t0, 5)
                    if k == "salu":
                        req(t0, 1)
            elif wk == "rdlane" and is_src:
                if valu_like:
                    req(t0, 2)
                if k == "vmem":
                    req(t0, 5)
                if k == "salu":
                    req(t0, 1)
            elif wk == "salu" and r == ("m0", 0) and ins.lds_dma:
                req(t0, 1)
        if k == "mfma":
            for r in ins.dst:
                w = self.wr.get(r)
                if w and w[1] == "mfma" and tuple(ins.srcC) != w[2]:
                    req(w[0], 10)
        if valu_like or k in ("vmem", "lds"):
            for r in ins.dst:
                if r in self.cread:
                    req(self.cread[r], 7)
                if r in self.wstore:
                    req(self.wstore[r], 2)
        return need

    def _waits(self, ins):
        touched = set(ins.src) | set(ins.dst) | set(ins.srcC)
        nv = nl = None
        for i, (d, tag) in enumerate(self.vm):
            if d & touched:
                nv = len(self.vm) - 1 - i
        for i, (d, tag) in enumerate(self.lg):
            if d & touched:
                nl = len(self.lg) - 1 - i
        return nv, nl

    def wait(self, vm=None, lg=None):
        parts = []
        if vm is not None:
            vm = min(vm, 63)
            if vm < len(self.vm) or not self.auto:
                parts.append("vmcnt(%d)" % vm)
                self.vm = self.vm[len(self.vm) - vm:] if vm else []
        if lg is not None:
            lg = min(lg, 15)
            if lg < len(self.lg) or self.smem or not self.auto:
                parts.append("lgkmcnt(%d)" % lg)
                self.lg = self.lg[len(self.lg) - lg:] if lg else []
                if lg == 0:
                    self.smem = False
        if parts:
            self._emit(I("s_waitcnt " + " ".join(parts)))

    def force_wait(self, vm=None, lg=None):
        a = self.auto
        self.auto = False
        self.wait(vm, lg)
        self.auto = a

    def wait_tag(self, tag):
        idx = None
        for i, (d, tg) in enumerate(self.vm):
            if tg == tag:
                idx = i
        if idx is not None:
            self.wait(vm=len(self.vm) - 1 - idx)

    def __call__(self, text, tag=None):
        for line in text.split("\n"):
            line = line.strip()
            if not line:
                continue
            if line.startswith(";"):
                self.raw("    " + line)
                continue
            if line.startswith("@wait_tag"):
                self.wait_tag(line.split()[1])
                continue
            if line.endswith(":"):
                self.label(line[:-1])
                continue
            tg = tag
            if "@" in line:
                line, tg = line.split("@")
                line = line.strip()
                tg = tg.strip()
            ins = I(line, tg)
            if tg == "nodst":
                ins.dst = []
            self.one(ins)

    def lines(self, lst):
        for l in lst:
            self(l)

    def one(self, ins):
        if ins.kind == "wait":
            m = re.search(r"vmcnt\((\d+)\)", ins.text)
            n = re.search(r"lgkmcnt\((\d+)\)", ins.text)
            self.force_wait(int(m.group(1)) if m else None, int(n.group(1)) if n else None)
            return
        if self.auto:
            nv, nl = self._waits(ins)
            if nv is not None or nl is not None:
                self.wait(nv, nl)
        need = self._need(ins)
        while need > 0:
            n = min(need, 16)
            self._emit(I("s_nop %d" % (n - 1)))
            self.nnop += n
            need -= n
        t0 = self.t
        self._emit(ins)
        k = ins.kind
        if k == "vmem":
            self.vm.append((set(ins.dst), ins.tag))
            for r in ins.dst:
                self.wr.pop(r, None)
            if ins.wide_store:
                for r in ins.wide_store:
                    self.wstore[r] = t0
        elif k == "lds":
            self.lg.append((set(ins.dst), ins.tag))
            for r in ins.dst:
                self.wr.pop(r, None)
        elif k == "smem":
            self.smem = True
        elif k == "mfma":
            for r in ins.dst:
                self.wr[r] = (t0, "mfma", tuple(ins.dst))
            for r in ins.srcC:
                self.cread[r] = t0
        elif k in ("valu", "trans", "perm", "rdlane", "salu"):
            for r in ins.dst:
                self.wr[r] = (t0, k, "dot" if ins.op.startswith("v_dot") else None)

    def settle(self):
        need = 0
        for r, (t0, wk, extra) in self.wr.items():
            n = {"mfma": 12, "valu": 5 if r[0] not in "va" else 2, "trans": 2, "perm": 2, "rdlane": 5, "salu": 1 if r[0] == "m0" else 0}[wk]
            if extra == "dot":
                n = 3
            need = max(need, n - (self.t - t0 - 1))
        for r, t0 in self.cread.items():
            need = max(need, 7 - (self.t - t0 - 1))
        for r, t0 in self.wstore.items():
            need = max(need, 2 - (self.t - t0 - 1))
        while need > 0:
            n = min(need, 16)
            self._emit(I("s_nop %d" % (n - 1)))
            need -= n

    def join(self):
        self.wait(vm=0, lg=0)
        self.settle()

    def check_backedge(self, label, n=16):
        i = self.labels[label]
        t_save = self.t
        cnt = 0
        self.t += 1
        while cnt < n and i < len(self.ins):
            ins = self.ins[i]
            i += 1
            if ins is None:
                continue
            need = self._need(ins)
            assert need <= 0, "back-edge hazard at %s: %s needs %d" % (label, ins.text, need)
            self.t += ins.nstates
            cnt += 1
        self.t = t_save

    def text(self):
        return "\n".join(self.out) + "\n"


def interleave(main, filler, start=0, end=None):
    out = []
    end = len(main) if end is None else end
    n = max(end - start, 1)
    done = 0
    for i, m in enumerate(main):
        out += m if isinstance(m, list) else [m]
        if start <= i < end:
            want = (len(filler) * (i - start + 1) + n - 1) // n
            out += filler[done:want]
            done = want
    out += filler[done:]
    return out
```

```python
import sys, math, struct
from asmlib import Asm, interleave

NAME = "interleave_layers__softmax_full_mha__mixer_s_mlp__prompt"


def f2u(x):
    return struct.unpack("<I", struct.pack("<f", x))[0]


def fx(x):
    return "0x%08x" % f2u(x)


def flat(G):
    out = []
    for g in G:
        out += g if isinstance(g, list) else [g]
    return out


TS_OFF = 0x20000
CS_OFF = 0xC0000
LB0, LBSTR = 0x140000, 0x2000000
Q_OFF, KV_OFF, O_OFF = 0x0, 0x200000, 0x600000
XM_OFF, H_OFF, X1_OFF, XO_OFF, G_OFF = 0x800000, 0xA00000, 0xC00000, 0xE00000, 0x1000000
SM_OFF, S1_OFF, SO_OFF, QN_OFF, KN_OFF = 0x1800000, 0x1840000, 0x1880000, 0x18C0000, 0x18C4000
PK_OFF = 0x4140000
WS_SIZE = 0x4300000
OOB = 0x40000000
LA, LBB, LC, LEND = 0, 57344, 114688, 163840
QKVW = LBB
SECPOS = {1: 0, 0: 28672, 2: 57344}
QSCR = LC + 28672
W3SCR = LEND - 2048
W1SCR = LEND - 1024

sX, sWQ, sWO, sW1, sW2, sW3, sW4, sOUT, sDBG, sWS = [f"s[{4*i}:{4*i+3}]" for i in range(1, 11)]
sW, sXCD, sSLOT, sLAYER, sLB = "s44", "s45", "s46", "s47", "s48"
sQTB, sQH, sAH, sAQB, sTB64, sFT, sT128, sF3 = "s49", "s50", "s51", "s52", "s53", "s54", "s55", "s56"
sACT, sKH, sNI, sTB32, sCSW = "s57", "s58", "s59", "s60", "s61"
sG4 = "s62"
sFL = [f"s{64+i}" for i in range(7)]
sT = [f"s{72+i}" for i in range(8)]
sEX = "s[80:81]"
sHI = "s[82:83]"
sPADM = "s[84:85]"
sPM = "s[86:87]"
sONES = "s88"
sC = [f"s{90+i}" for i in range(6)]
sTSV = "s[96:97]"
vL, vL16, vL4, vTR, vTQ, vDM, vM, vR1 = "v1", "v2", "v3", "v4", "v5", "v6", "v8", "v9"
vTS = "v7"
vT = [f"v{10+i}" for i in range(6)]
aRES = 240
MF = "v_mfma_f32_32x32x16_bf16"


def vr(b, n=4):
    return f"v[{b}:{b+n-1}]"


def ar(b, n=4):
    return f"a[{b}:{b+n-1}]"


def pk(op, d, *srcs, neg=None):
    ops, hi = [], []
    for s in srcs:
        if isinstance(s, tuple):
            assert s[1] % 2 == 0
            ops.append(vr(s[1], 2))
            hi.append(0)
        else:
            assert s % 2 == 0
            ops.append(vr(s, 2))
            hi.append(1)
    t = f"v_pk_{op}_f32 {vr(d,2)}, " + ", ".join(ops)
    if 0 in hi:
        t += " op_sel_hi:[" + ",".join(map(str, hi)) + "]"
    if neg:
        n = "[" + ",".join(map(str, neg)) + "]"
        t += f" neg_lo:{n} neg_hi:{n}"
    return t


class Gen:
    def __init__(self, stop=None, prof=0, force_fallback=False, opt=None):
        self.A = Asm()
        self.stop = stop
        self.prof = prof
        self.force_fallback = force_fallback
        self.uid = 0
        self.nts = 0
        self.tsnames = []
        self.opt = opt or {}

    def lab(self, s):
        self.uid += 1
        return f"L_{s}_{self.uid}"

    def ts(self, name):
        if not self.prof:
            return
        A = self.A
        i = self.nts
        self.nts += 1
        if i >= 64: return
        self.tsnames.append(name)
        A(f"{'s_memtime' if self.prof == 2 else 's_memrealtime'} {sTSV}")
        A("s_waitcnt lgkmcnt(0)")
        A(f"v_writelane_b32 {vTS}, s96, {i}")

    def ts_store(self):
        if not self.prof:
            return
        A = self.A
        A.settle()
        A(f"s_lshl_b32 {sT[0]}, s2, 2")
        A(f"s_add_u32 {sT[0]}, {sT[0]}, {sW}")
        A(f"s_lshl_b32 {sT[0]}, {sT[0]}, 1")
        A(f"s_add_u32 {sT[0]}, {sT[0]}, {sLAYER}")
        A(f"s_lshl_b32 {sT[0]}, {sT[0]}, 8")
        A(f"s_add_u32 {sT[0]}, {sT[0]}, {TS_OFF}")
        A(f"buffer_store_dword {vTS}, {vL4}, {sWS}, {sT[0]} offen")

    def phase_end(self, name):
        if self.stop and self.stop[0] == name:
            A = self.A
            A("s_waitcnt vmcnt(0) lgkmcnt(0)")
            A.settle()
            A(f"s_cmp_eq_u32 {sLAYER}, {self.stop[1]}")
            A("s_cbranch_scc1 L_finish")

    def signal(self, t, after=None):
        A = self.A
        if after:
            A.lines(flat(after))
            A.wait_tag("st")
            A("s_waitcnt lgkmcnt(0)")
        else:
            A("s_waitcnt vmcnt(0) lgkmcnt(0)")
        keep = list(A.vm)
        A("s_barrier")
        l = self.lab("sig")
        A(f"s_cmp_lg_u32 {sW}, 0")
        A(f"s_cbranch_scc1 {l}")
        A(f"s_add_u32 {sT[0]}, {sLAYER}, 1")
        A(f"v_mov_b32 {vT[0]}, {sT[0]}")
        A(f"v_mov_b32 {vT[1]}, 0")
        A("s_mov_b64 exec, 1")
        A(f"buffer_store_dword {vT[0]}, {vT[1]}, {sWS}, {sFL[t]} offen sc1")
        A("s_mov_b64 exec, -1")
        A.settle()
        A.vm = keep
        A(f"{l}:")

    def poll(self, addr_lines, mask_lines, bias=1, srd=sWS, eq=None, barrier=True):
        A = self.A
        l = self.lab("poll")
        A("s_waitcnt vmcnt(0) lgkmcnt(0)")
        A.settle()
        A(f"s_cmp_lg_u32 {sW}, 0")
        A(f"s_cbranch_scc1 {l}_done")
        A.lines(addr_lines)
        A.lines(mask_lines)
        if eq is None:
            A(f"s_add_u32 {sT[0]}, {sLAYER}, {bias}")
        else:
            A(f"s_mov_b32 {sT[0]}, {eq}")
        A(f"s_mov_b64 exec, {sPM}")
        A(f"s_mov_b32 {sT[1]}, 0")
        A.settle()
        A(f"{l}_loop:")
        A(f"buffer_load_dword {vT[1]}, {vT[0]}, {srd}, 0 offen sc1")
        A(f"s_add_u32 {sT[1]}, {sT[1]}, 1")
        A(f"s_cmp_gt_u32 {sT[1]}, 0x40000")
        A(f"s_cbranch_scc1 {l}_out")
        A("s_waitcnt vmcnt(0)")
        A(f"v_cmp_gt_u32 vcc, {sT[0]}, {vT[1]}")
        A(f"s_cbranch_vccnz {l}_loop")
        A(f"{l}_out:")
        A("s_waitcnt vmcnt(0)")
        A("s_mov_b64 exec, -1")
        A(f"{l}_done:")
        if barrier:
            A("s_barrier")

    def poll_simple(self, t, group_sgpr, nmemb):
        self.poll([f"s_lshl_b32 {sT[2]}, {group_sgpr}, 7", f"s_add_u32 {sT[2]}, {sT[2]}, {t*8192}",
                   f"v_add_u32 {vT[0]}, {sT[2]}, {vL4}"],
                  [f"s_mov_b64 {sPM}, {hex((1 << nmemb) - 1)}"])

    def poll_lines(self, t, first_line_lines, mask_lines, bias=1):
        self.poll(first_line_lines + [
            f"s_lshl_b32 {sT[2]}, {sT[2]}, 7", f"s_add_u32 {sT[2]}, {sT[2]}, {t*8192}",
            f"v_lshrrev_b32 {vT[1]}, 3, {vL}", f"v_lshlrev_b32 {vT[1]}, 7, {vT[1]}",
            f"v_and_b32 {vT[0]}, 7, {vL}", f"v_lshlrev_b32 {vT[0]}, 2, {vT[0]}",
            f"v_add3_u32 {vT[0]}, {vT[0]}, {vT[1]}, {sT[2]}"], mask_lines, bias=bias)

    def dma_tile64(self, srd, stride, col_lines, lds_base, vdm):
        L = list(col_lines)
        L += [f"s_mul_i32 {sT[4]}, {sW}, {14*8*stride}", f"s_add_u32 {sT[3]}, {sT[3]}, {sT[4]}",
              f"s_mul_i32 {sT[4]}, {sW}, {14*1024}", f"s_add_u32 m0, {sT[4]}, {lds_base}"]
        G = []
        for i in range(14):
            if i:
                L = [f"s_add_u32 {sT[3]}, {sT[3]}, {8*stride}", "s_add_u32 m0, m0, 1024"]
            G.append(L + [f"buffer_load_dwordx4 {vdm}, {srd}, {sT[3]} offen lds @dma"])
        return G

    def dm_lane(self, dst, stride):
        t = vT[5]
        return [f"v_lshrrev_b32 {dst}, 5, {vL}", f"v_lshlrev_b32 {dst}, 2, {dst}",
                f"v_bfe_u32 {t}, {vL}, 2, 2", f"v_add_u32 {dst}, {dst}, {t}",
                f"v_mul_u32_u24 {dst}, {stride}, {dst}",
                f"v_bfe_u32 {t}, {vL}, 4, 1", f"v_lshlrev_b32 {t}, 6, {t}", f"v_add_u32 {dst}, {dst}, {t}",
                f"v_and_b32 {t}, 3, {vL}", f"v_lshlrev_b32 {t}, 4, {t}", f"v_add_u32 {dst}, {dst}, {t}"]

    def dma_qkvw_raw(self):
        t, d = vT[5], vT[4]
        L = [f"v_lshrrev_b32 {d}, 2, {vL}", f"v_mul_u32_u24 {d}, 2688, {d}",
             f"v_and_b32 {t}, 3, {vL}", f"v_lshlrev_b32 {t}, 4, {t}", f"v_add_u32 {d}, {d}, {t}",
             f"s_mul_i32 {sT[2]}, {sQH}, 56", f"s_mul_i32 {sT[4]}, {sW}, {7*16*2688}",
             f"s_add_u32 {sT[2]}, {sT[2]}, {sT[4]}", f"s_mul_i32 {sT[4]}, {sW}, {7*1024}"]
        for sec in (2, 1, 0):
            L += [f"s_add_u32 {sT[3]}, {sT[2]}, {sec*896}", f"s_add_u32 m0, {sT[4]}, {QKVW + SECPOS[sec]}"]
            for i in range(7):
                if i:
                    L += [f"s_add_u32 {sT[3]}, {sT[3]}, {16*2688}", "s_add_u32 m0, m0, 1024"]
                L += [f"buffer_load_dwordx4 {d}, {sWQ}, {sT[3]} offen {'sc1' if self.opt.get('wqsc1', 0) else ''} lds @wq"]
        return L

    def dma_qkvw_packed(self):
        L = [f"s_mul_i32 {sT[3]}, {sQH}, 86016", f"s_mul_i32 {sT[4]}, {sW}, 21504", f"s_add_u32 {sT[3]}, {sT[3]}, {sT[4]}",
             f"s_add_u32 {sT[3]}, {sT[3]}, {PK_OFF}", f"s_add_u32 m0, {sT[4]}, {QKVW}"]
        G = []
        for i in range(21):
            if i and i % 4 == 0:
                L = [f"s_add_u32 {sT[3]}, {sT[3]}, 4096", "s_add_u32 m0, m0, 4096"]
            G.append(L + [f"buffer_load_dwordx4 {vL16}, {sWS}, {sT[3]} offen offset:{(i%4)*1024} sc1 lds @wq"])
            L = []
        G.append(self.cs_restore(0, QSCR, 24))
        return G

    def cs_restore(self, off, lds, nlanes):
        return [f"s_add_u32 {sT[4]}, {sCSW}, {off}", f"s_mov_b32 m0, {lds}", f"s_mov_b64 exec, {hex((1 << nlanes) - 1)}",
                f"buffer_load_dwordx4 {vL16}, {sWS}, {sT[4]} offen sc1 lds @cs", "s_mov_b64 exec, -1"]

    def cs_save(self, acc, tile_sgpr, lds, off):
        L = [f"s_lshl_b32 {sT[0]}, {tile_sgpr}, 7",
             f"v_lshrrev_b32 {vT[0]}, 5, {vL}", f"v_lshlrev_b32 {vT[0]}, 4, {vT[0]}",
             f"v_add_u32 {vT[0]}, {sT[0]}, {vT[0]}", f"v_add_u32 {vT[1]}, {lds}, {vT[0]}",
             f"s_add_u32 {sT[0]}, {sCSW}, {off}",
             "s_mov_b32 s80, 1", "s_mov_b32 s81, 1", f"s_mov_b64 exec, {sEX}"]
        for i in range(4):
            L.append(f"ds_write_b128 {vT[1]}, {vr(acc+4*i)} offset:{32*i}")
        for i in range(4):
            L.append(f"buffer_store_dwordx4 {vr(acc+4*i)}, {vT[0]}, {sWS}, {sT[0]} offen offset:{32*i} sc1")
        L.append("s_mov_b64 exec, -1")
        return L

    def frag_loads(self, regs, base_lines, n, vaddr=vL16, s=None):
        s = s or sT[2]
        G = []
        L = list(base_lines)
        for i in range(n):
            if i and i % 4 == 0:
                L.append(f"s_add_u32 {s}, {s}, 4096")
            va = vaddr(i) if callable(vaddr) else vaddr
            L.append(f"buffer_load_dwordx4 {regs(i)}, {va}, {sWS}, {s} offen offset:{(i%4)*1024} sc1")
            G.append(L)
            L = []
        return G

    def stats_loads(self, off, tb, dst):
        G = []
        L = [f"s_mul_i32 {sT[5]}, {tb}, 3584", f"s_add_u32 {sT[5]}, {sT[5]}, {off}"]
        for i in range(14):
            G.append(L + [f"buffer_load_dword v{dst+i}, {vL4}, {sWS}, {sT[5]} offen offset:{i*256} sc1"])
            L = []
        return G

    def stats_sum(self, src, s1, s2):
        L = []
        cur = [src + i for i in range(14)]
        while len(cur) > 1:
            nxt = []
            for i in range(0, len(cur) - 1, 2):
                L.append(f"v_add_f32 v{cur[i]}, v{cur[i]}, v{cur[i+1]}")
                nxt.append(cur[i])
            if len(cur) % 2:
                nxt.append(cur[-1])
            cur = nxt
        L += [f"v_mov_b32 {s1}, v{cur[0]}", f"v_mov_b32 {s2}, v{cur[0]}", f"v_permlane32_swap_b32 {s1}, {s2}"]
        return L

    def stats_fin(self, s1, s2, m, var):
        return [f"v_mul_f32 {m}, {sC[0]}, {s1}", f"v_mul_f32 {var}, {sC[0]}, {s2}",
                f"v_fma_f32 {var}, -{m}, {m}, {var}", f"v_max_f32 {var}, 0, {var}"]

    def stats_out(self, val, off, tmp):
        a, b = tmp, tmp + 2
        L = [pk("add", a, val, val + 2), pk("mul", b, val, val)]
        for i in range(2, 16, 2):
            L.append(pk("fma", b, val + i, val + i, b))
            if i >= 4:
                L.append(pk("add", a, a, val + i))
        L += [f"v_add_f32 v{a}, v{a}, v{a+1}", f"v_add_f32 v{b}, v{b}, v{b+1}",
              f"s_mul_i32 {sT[5]}, {sTB32}, 3584", f"s_lshl_b32 {sT[6]}, {sFT}, 9", f"s_add_u32 {sT[5]}, {sT[5]}, {sT[6]}",
              f"v_permlane32_swap_b32 v{a}, v{b}",
              f"s_lshl_b32 {sT[6]}, {sKH}, 8", f"s_add_u32 {sT[5]}, {sT[5]}, {sT[6]}",
              f"v_add_f32 v{a}, v{a}, v{b}",
              f"s_add_u32 {sT[5]}, {sT[5]}, {sLB}", f"s_add_u32 {sT[5]}, {sT[5]}, {off}",
              f"buffer_store_dword v{a}, {vL4}, {sWS}, {sT[5]} offen sc1 @st"]
        return L

    def pack_store(self, val, tmp, soff, off0=0, fix=None):
        L = []
        for d in range(8):
            L.append(f"v_cvt_pk_bf16_f32 v{tmp+d}, v{val+2*d}, v{val+2*d+1}")
            if fix:
                L += fix(d, tmp + d)
            if d == 3:
                L.append(f"buffer_store_dwordx4 {vr(tmp)}, {vL16}, {sWS}, {soff} offen offset:{off0} sc1 @st")
        L.append(f"buffer_store_dwordx4 {vr(tmp+4)}, {vL16}, {sWS}, {soff} offen offset:{off0+1024} sc1 @st")
        return L

    def tile_off(self, off, s):
        return [f"s_mul_i32 {s}, {sTB32}, 28672", f"s_lshl_b32 {sT[6]}, {sFT}, 12", f"s_add_u32 {s}, {s}, {sT[6]}",
                f"s_lshl_b32 {sT[6]}, {sKH}, 11", f"s_add_u32 {s}, {s}, {sT[6]}",
                f"s_add_u32 {s}, {s}, {sLB}", f"s_add_u32 {s}, {s}, {off}"]

    def tr(self, dst, vaddr, off, second, vaddr2=None):
        kind, b = dst
        r = vr if kind == "v" else ar
        return [f"ds_read_b64_tr_b16 {r(b,2)}, {vaddr} offset:{off}",
                f"ds_read_b64_tr_b16 {r(b+2,2)}, {vaddr2 or vaddr} offset:{off+second}"]

    def colsum(self, vaddr, off_of, second, acc, stage, ones):
        L = [f"v_mov_b32 v{ones+i}, {sONES}" for i in range(4)]
        D = 5
        for ks in range(D):
            L += self.tr(("v", stage + 4 * (ks % 6)), vaddr, off_of(ks), second)
        for ks in range(28):
            L.append(f"{MF} {vr(acc,16)}, {vr(stage+4*(ks%6))}, {vr(ones)}, {vr(acc,16) if ks else '0'}")
            if ks + D < 28:
                L += self.tr(("v", stage + 4 * ((ks + D) % 6)), vaddr, off_of(ks + D), second)
        return L

    def gelu_pre(self, acc, cs, w, m, ka, kb):
        L = []
        for g in range(0, 16, 8):
            r = range(g, g + 8, 2)
            L += [pk("fma", acc + i, ("b", m), cs + i, acc + i, neg=[1, 0, 0]) for i in r]
            L += [pk("mul", w + i, acc + i, acc + i) for i in r]
            L += [pk("fma", w + i, w + i, ("b", kb), ("b", ka)) for i in r]
            L += [pk("mul", w + i, w + i, acc + i) for i in r]
        return L

    def gelu_post(self, acc, w, iR, packed):
        L = []
        for g in range(0, 16, 4):
            r = range(g, g + 4)
            L += [f"v_exp_f32 v{w+i}, v{w+i}" for i in r]
            if packed:
                L += [pk("fma", w + i, w + i, ("b", iR), ("b", iR)) for i in (g, g + 2)]
            else:
                L += [f"v_fma_f32 v{w+i}, v{w+i}, v{iR}, v{iR}" for i in r]
            L += [f"v_rcp_f32 v{w+i}, v{w+i}" for i in r]
            if packed:
                L += [pk("mul", acc + i, acc + i, w + i) for i in (g, g + 2)]
            else:
                L += [f"v_mul_f32 v{acc+i}, v{acc+i}, v{w+i}" for i in r]
        return L

    def gelu_consts(self, R, ka, kb, iR):
        return [f"v_mul_f32 v{ka}, {sC[2]}, {R}", f"v_mul_f32 v{kb}, {R}, {R}", f"v_mul_f32 v{kb}, v{kb}, {R}",
                f"v_mul_f32 v{kb}, {sC[3]}, v{kb}", f"v_rcp_f32 v{iR}, {R}"]

    def touch(self, srd, idx_sgpr_lines, lines_per_wave, dst, base=0):
        n = (lines_per_wave + 63) // 64
        L = list(idx_sgpr_lines) + [f"s_mul_i32 {sT[3]}, {sT[3]}, {lines_per_wave*128}"]
        if base:
            L.append(f"s_add_u32 {sT[3]}, {sT[3]}, {base}")
        L.append(f"v_lshlrev_b32 {vT[5]}, 7, {vL}")
        G = []
        for i in range(n):
            if i:
                L = [f"s_add_u32 {sT[3]}, {sT[3]}, 8192"]
            G.append(L + [f"buffer_load_dword v{dst}, {vT[5]}, {srd}, {sT[3]} offen"])
        return G

    def warm(self, srd, idx_sgpr_lines, n, per_wave_bytes, dst, base=0):
        L = list(idx_sgpr_lines) + [f"s_mul_i32 {sT[3]}, {sT[3]}, {per_wave_bytes}"]
        if base:
            L.append(f"s_add_u32 {sT[3]}, {sT[3]}, {base}")
        G = []
        for i in range(n):
            if i and i % 4 == 0:
                L = [f"s_add_u32 {sT[3]}, {sT[3]}, 4096"]
            G.append(L + [f"buffer_load_dwordx4 {vr(dst)}, {vL16}, {srd}, {sT[3]} offen offset:{(i%4)*1024} @nodst"])
            L = []
        return G

    def prologue(self):
        A = self.A
        A("s_cmp_ge_u32 s2, 256")
        A("s_cbranch_scc1 L_exit")
        A("s_load_dwordx16 s[48:63], s[0:1], 0")
        A("s_load_dwordx4 s[64:67], s[0:1], 64")
        A("s_load_dwordx2 s[68:69], s[0:1], 80")
        A(f"v_and_b32 {vL}, 63, v0")
        A(f"v_lshrrev_b32 {vT[0]}, 6, v0")
        A(f"v_lshlrev_b32 {vL16}, 4, {vL}")
        A(f"v_readfirstlane_b32 {sW}, {vT[0]}")
        A(f"v_lshlrev_b32 {vL4}, 2, {vL}")
        A(f"v_mov_b32 {vTS}, 0")
        t = vT[0]
        A(f"v_bfe_u32 {vTQ}, {vL}, 2, 2")
        A(f"v_lshlrev_b32 {vTQ}, 6, {vTQ}")
        A(f"v_bfe_u32 {t}, {vL}, 4, 1")
        A(f"v_lshlrev_b32 {t}, 5, {t}")
        A(f"v_add_u32 {vTQ}, {vTQ}, {t}")
        A(f"v_and_b32 {t}, 3, {vL}")
        A(f"v_lshlrev_b32 {t}, 3, {t}")
        A(f"v_add_u32 {vTQ}, {vTQ}, {t}")
        A(f"v_lshrrev_b32 {t}, 5, {vL}")
        A(f"v_lshlrev_b32 {t}, 9, {t}")
        A(f"v_add_u32 {vTR}, {vTQ}, {t}")
        A.lines(self.dm_lane(vDM, 896))
        A(f"s_and_b32 {sXCD}, s2, 7")
        A(f"s_lshr_b32 {sSLOT}, s2, 3")
        A(f"s_mov_b32 {sLAYER}, 0")
        A("s_mov_b32 s82, 0")
        A("s_mov_b32 s83, -1")
        A("s_mov_b32 s84, 0xf0000000")
        A("s_mov_b32 s85, 0xf0000000")
        A(f"s_mov_b32 {sONES}, 0x3f803f80")
        k0 = -2.0 * math.log2(math.e) * math.sqrt(2.0 / math.pi)
        for i, c in enumerate([1.0 / 448, 1e-5, k0, k0 * 0.044715, 28 ** -0.5 * math.log2(math.e), 3000.0]):
            A(f"s_mov_b32 {sC[i]}, {fx(c)}")
        A("s_waitcnt lgkmcnt(0)")
        srcs = [(48, 2048 * 896), (50, 448 * 2688), (52, 448 * 896), (56, 448 * 896), (58, 448 * 896),
                (60, 448 * 3584), (62, 1792 * 896), (64, 2048 * 896), (66, 256), (68, WS_SIZE)]
        for i, (p, n) in enumerate(srcs):
            b = 4 + 4 * i
            A(f"s_mov_b32 s{b}, s{p}")
            A(f"s_mov_b32 s{b+1}, s{p+1}")
            A(f"s_mov_b32 s{b+2}, {n}")
            A(f"s_mov_b32 s{b+3}, 0x20000")
        A(f"s_mov_b32 {sLB}, {LB0}")
        self.ts("start")
        A(f"s_lshr_b32 {sT[0]}, {sSLOT}, 4")
        A(f"s_lshl_b32 {sT[1]}, {sXCD}, 1")
        A(f"s_add_u32 {sAH}, {sT[0]}, {sT[1]}")
        A(f"s_and_b32 {sQH}, {sSLOT}, 15")
        A(f"s_mov_b32 {sAQB}, {sQH}")
        A(f"s_lshl_b32 {sQTB}, {sAH}, 2")
        A(f"s_add_u32 {sQTB}, {sQTB}, {sW}")

    def prologue2(self):
        A = self.A
        A(f"s_cmp_lt_u32 {sSLOT}, 28")
        A(f"s_cselect_b32 {sACT}, 1, 0")
        A(f"s_mul_i32 {sT[0]}, {sSLOT}, 37")
        A(f"s_lshr_b32 {sT[0]}, {sT[0]}, 8")
        A(f"s_mul_i32 {sT[1]}, {sT[0]}, 7")
        A(f"s_sub_u32 {sFT}, {sSLOT}, {sT[1]}")
        A(f"s_lshl_b32 {sT[1]}, {sXCD}, 2")
        A(f"s_add_u32 {sTB64}, {sT[0]}, {sT[1]}")
        A(f"s_lshr_b32 {sT[0]}, {sT[0]}, 1")
        A(f"s_mul_i32 {sT[1]}, {sT[0]}, 14")
        A(f"s_sub_u32 {sF3}, {sSLOT}, {sT[1]}")
        A(f"s_lshl_b32 {sT[1]}, {sXCD}, 1")
        A(f"s_add_u32 {sT128}, {sT[0]}, {sT[1]}")
        A(f"s_lshr_b32 {sKH}, {sW}, 1")
        A(f"s_and_b32 {sNI}, {sW}, 1")
        A(f"s_lshl_b32 {sTB32}, {sTB64}, 1")
        A(f"s_add_u32 {sTB32}, {sTB32}, {sNI}")
        A(f"s_lshl_b32 {sCSW}, s2, 11")
        A(f"s_add_u32 {sCSW}, {sCSW}, {CS_OFF}")
        def fl(t, g, m):
            A(f"s_lshl_b32 {sT[0]}, {g}, 7")
            A(f"s_lshl_b32 {sT[1]}, {m}, 2")
            A(f"s_add_u32 {sT[0]}, {sT[0]}, {sT[1]}")
            A(f"s_add_u32 {sFL[t]}, {sT[0]}, {t*8192}")
        fl(0, sQH, sAH)
        fl(1, sAQB, sAH)
        for t in (2, 3, 4, 6):
            fl(t, sTB64, sFT)
        fl(5, sT128, sF3)

    def flag_init(self):
        A = self.A
        keep = list(A.vm)
        l = self.lab("init")
        A(f"s_cmp_lg_u32 {sW}, 3")
        A(f"s_cbranch_scc1 {l}")
        A(f"v_mov_b32 {vT[0]}, 0")
        A("s_mov_b64 exec, 1")
        for t in range(2):
            A(f"buffer_store_dword {vT[0]}, {vT[0]}, {sWS}, {sFL[t]} offen sc1")
        A(f"s_cmp_eq_u32 {sACT}, 0")
        A(f"s_cbranch_scc1 {l}_b")
        for t in range(2, 7):
            A(f"buffer_store_dword {vT[0]}, {vT[0]}, {sWS}, {sFL[t]} offen sc1")
        A(f"{l}_b:")
        A(f"s_and_b32 {sT[0]}, s2, 63")
        A(f"s_lshl_b32 {sT[0]}, {sT[0]}, 2")
        A(f"v_mov_b32 {vT[1]}, 1")
        A("s_waitcnt vmcnt(0)")
        A(f"buffer_atomic_add {vT[1]}, {vT[0]}, {sDBG}, {sT[0]} offen sc1")
        A("s_mov_b64 exec, -1")
        A.settle()
        A.vm = keep
        A(f"{l}:")

    def qkv_addr(self, layer0):
        A = self.A
        a1, a2, b1, b2 = vT[0], vT[1], vT[2], vT[3]
        A(f"v_lshrrev_b32 {a1}, 5, {vL}")
        A(f"v_lshlrev_b32 {a1}, {9 if layer0 else 8}, {a1}")
        A(f"s_mov_b32 {sT[0]}, {QKVW}")
        A(f"v_add3_u32 {a1}, {a1}, {vTQ}, {sT[0]}")
        A(f"v_add_u32 {a2}, {256 if layer0 else 512}, {a1}")
        A(f"v_add_u32 {b1}, 57344, {a1}")
        A(f"v_add_u32 {b2}, 57344, {a2}")

    def q_rd(self, i):
        a1, a2, b1, b2 = vT[0], vT[1], vT[2], vT[3]
        st = ("v", 176 + 4 * (i % 6))
        if i < 56:
            ks, p = divmod(i, 2)
            return self.tr(st, b1, ks * 1024, 0, b2) if p else self.tr(st, a1, ks * 1024, 0, a2)
        return self.tr(st, a1, 28672 + (i - 56) * 1024, 0, a2)

    def q_mm(self, i):
        w = vr(176 + 4 * (i % 6))
        if i < 56:
            ks, p = divmod(i, 2)
            x = vr(16 + 4 * ks)
            acc = vr(160 if p else 128, 16)
            a, b = (x, w) if p else (w, x)
        else:
            ks = i - 56
            a, b, acc = w, vr(16 + 4 * ks), vr(144, 16)
        return f"{MF} {acc}, {a}, {b}, {acc if ks else '0'}"

    QD = 5

    def qkv_p1(self, layer0, loads=None):
        A = self.A
        s1, s2 = "v200", "v201"
        def dots(ks):
            L = []
            for j in range(4):
                r = f"v{16+4*ks+j}"
                L.append(f"v_dot2_f32_bf16 {s1}, {r}, {sONES}, {s1}")
                L.append(f"v_dot2_f32_bf16 {s2}, {r}, {r}, {s2}")
            return L
        if layer0:
            A(f"v_mov_b32 {s1}, 0")
            A(f"v_mov_b32 {s2}, 0")
        for i in range(self.QD):
            A.lines(self.q_rd(i))
        loads = list(loads or [])
        for i in range(56):
            ks, p = divmod(i, 2)
            if layer0 and i == 28:
                A("@wait_tag x1")
                A.lines(self.xreads(1))
            A(self.q_mm(i))
            A.lines(self.q_rd(i + self.QD))
            if layer0:
                A.lines(dots(ks)[4 * p:4 * p + 4])
            if loads:
                A.lines(loads.pop(0))
        if layer0:
            for s in (s1, s2):
                A(f"v_mov_b32 v202, {s}")
                A(f"v_permlane32_swap_b32 v202, {s}")
                A(f"v_add_f32 {s}, {s}, v202")

    def xdma(self, rnd):
        d, t = "v253", vT[5]
        L = []
        if rnd == 0:
            L += [f"v_lshrrev_b32 {d}, 2, {vL}", f"v_mul_u32_u24 {d}, 896, {d}",
                  f"v_lshrrev_b32 {t}, 4, {vL}", f"v_xor_b32 {t}, {t}, {vL}", f"v_and_b32 {t}, 3, {t}",
                  f"v_lshlrev_b32 {t}, 4, {t}", f"v_add_u32 {d}, {d}, {t}"]
        L += [f"s_mul_i32 {sT[2]}, {sQTB}, {32*896}", f"s_mul_i32 m0, {sW}, 14336"]
        for q in range(14):
            seg, rh = 7 * rnd + (q >> 1), q & 1
            L += [f"s_add_u32 {sT[3]}, {sT[2]}, {rh*16*896 + seg*64}"]
            if q:
                L += ["s_add_u32 m0, m0, 1024"]
            L += [f"buffer_load_dwordx4 {d}, {sX}, {sT[3]} offen lds @x{rnd}"]
        return L

    def xtouch(self):
        d, t = vT[0], vT[1]
        return [f"v_and_b32 {d}, 31, {vL}", f"v_mul_u32_u24 {d}, 896, {d}", f"v_lshrrev_b32 {t}, 5, {vL}",
                f"v_lshlrev_b32 {t}, 7, {t}", f"v_add_u32 {d}, {d}, {t}", f"s_mul_i32 {sT[2]}, {sQTB}, {32*896}",
                f"buffer_load_dword v250, {d}, {sX}, {sT[2]} offen offset:384",
                f"buffer_load_dword v251, {d}, {sX}, {sT[2]} offen offset:640"]

    def xreads(self, rnd):
        e, o, t = "v254", "v255", vT[5]
        L = []
        if rnd == 0:
            L += [f"v_and_b32 {e}, 31, {vL}", f"v_lshlrev_b32 {e}, 6, {e}", f"s_mul_i32 {sT[2]}, {sW}, 14336",
                  f"v_add_u32 {e}, {sT[2]}, {e}",
                  f"v_bfe_u32 {t}, {vL}, 2, 2", f"v_lshrrev_b32 {o}, 5, {vL}", f"v_xor_b32 {t}, {t}, {o}",
                  f"v_xor_b32 {o}, 2, {t}", f"v_lshlrev_b32 {o}, 4, {o}", f"v_add_u32 {o}, {o}, {e}",
                  f"v_lshlrev_b32 {t}, 4, {t}", f"v_add_u32 {e}, {e}, {t}"]
        for k in range(14):
            ks = 14 * rnd + k
            L.append(f"ds_read_b128 {vr(16+4*ks)}, {e if k % 2 == 0 else o} offset:{(k >> 1)*2048}")
        return L

    def resid_load(self):
        A = self.A
        d, t = vT[0], vT[1]
        A(f"v_and_b32 {d}, 31, {vL}")
        A(f"v_mul_u32_u24 {d}, 896, {d}")
        A(f"v_lshrrev_b32 {t}, 5, {vL}")
        A(f"v_lshlrev_b32 {t}, 3, {t}")
        A(f"v_add_u32 {d}, {d}, {t}")
        A(f"s_mul_i32 {sT[2]}, {sTB32}, {32*896}")
        A(f"s_lshl_b32 {sT[3]}, {sFT}, 7")
        A(f"s_add_u32 {sT[2]}, {sT[2]}, {sT[3]}")
        A(f"s_lshl_b32 {sT[3]}, {sKH}, 6")
        A(f"s_add_u32 {sT[2]}, {sT[2]}, {sT[3]}")
        for i in range(4):
            A(f"buffer_load_dwordx2 {vr(240+2*i,2)}, {d}, {sX}, {sT[2]} offen offset:{16*i}")

    def resid_unpack(self):
        A = self.A
        for i in range(8):
            A(f"v_lshlrev_b32 {vT[0]}, 16, v{240+i}")
            A(f"v_and_b32 {vT[1]}, 0xffff0000, v{240+i}")
            A(f"v_accvgpr_write_b32 a{aRES+2*i}, {vT[0]}")
            A(f"v_accvgpr_write_b32 a{aRES+2*i+1}, {vT[1]}")

    def norm_out(self, val, off, n, packed):
        if packed:
            L = [pk("mul", n, val, val), pk("mul", n + 2, val + 12, val + 12)]
            L += [pk("fma", n, val + i, val + i, n) for i in range(2, 12, 2)]
            L += [pk("fma", n + 2, val + 14, val + 14, n + 2), f"v_add_f32 v{n}, v{n}, v{n+1}",
                  f"v_add_f32 v{n+2}, v{n+2}, v{n+3}"]
        else:
            L = [f"v_mul_f32 v{n}, v{val}, v{val}", f"v_mul_f32 v{n+1}, v{val+1}, v{val+1}",
                 f"v_mul_f32 v{n+2}, v{val+12}, v{val+12}"]
            L += [f"v_fmac_f32 v{n + i % 2}, v{val+i}, v{val+i}" for i in range(2, 12)]
            L += [f"v_fmac_f32 v{n+2}, v{val+i}, v{val+i}" for i in range(13, 16)]
            L += [f"v_add_f32 v{n}, v{n}, v{n+1}"]
        L += [f"v_cndmask_b32 v{n+2}, v{n+2}, 0, {sHI}", f"v_add_f32 v{n}, v{n}, v{n+2}",
              f"s_lshl_b32 {sT[5]}, {sQH}, 9", f"v_mov_b32 v{n+1}, v{n}", f"s_lshl_b32 {sT[6]}, {sQTB}, 3",
              f"s_add_u32 {sT[5]}, {sT[5]}, {sT[6]}", f"v_permlane32_swap_b32 v{n}, v{n+1}",
              f"s_add_u32 {sT[5]}, {sT[5]}, {sLB}", f"v_add_f32 v{n}, v{n}, v{n+1}",
              f"s_add_u32 {sT[5]}, {sT[5]}, {off}", f"v_lshrrev_b32 v{n+1}, 2, {vL}"]
        for r in (8, 4, 2, 1):
            L.append(f"v_max_f32_dpp v{n}, v{n}, v{n} row_ror:{r} row_mask:0xf bank_mask:0xf")
        L.append(["s_mov_b64 exec, 0x10001", f"buffer_store_dword v{n}, v{n+1}, {sWS}, {sT[5]} offen sc1 @st",
                  "s_mov_b64 exec, -1"])
        return L

    def qkv_p2(self):
        A = self.A
        m, var, R, nrm, RQ, nrq, csv, padv = "v202", "v203", "v204", "v205", "v206", "v202", "v203", "v207"
        sK, sQ = sT[7], sT[1]
        vh, vt = vT[4], vT[5]
        E = self.stats_fin("v200", "v201", m, var)
        E += [f"v_add_f32 {var}, {sC[1]}, {var}", f"v_rsq_f32 {R}, {var}",
              f"s_lshl_b32 {sT[0]}, {sW}, 8", f"s_add_u32 {sT[0]}, {sT[0]}, {QSCR + 512}",
              f"v_add_u32 {vt}, {sT[0]}, {vL4}", f"v_mul_f32 {nrm}, {R}, {m}",
              f"v_mul_f32 {RQ}, {sC[4]}, {R}", f"v_cndmask_b32 v200, {R}, {nrm}, {sHI}",
              f"ds_write_b32 {vt}, v200", f"v_mul_f32 {nrq}, {RQ}, {m}",
              f"v_lshrrev_b32 {vh}, 5, {vL}", f"v_lshlrev_b32 {vh}, 4, {vh}", f"v_add_u32 {vt}, {sT[0]}, {vh}",
              f"v_add_u32 {vh}, {QSCR}, {vh}"]
        E += [f"ds_read_b128 {vr(208+4*i)}, {vh} offset:{32*i}" for i in range(4)]
        E += [f"ds_read_b128 {vr(224+16*p+4*i)}, {vt} offset:{128*p+32*i}" for p in range(2) for i in range(4)]
        E += [f"v_and_b32 v200, 31, {vL}", "v_cmp_eq_u32 vcc, 28, v200", "v_lshlrev_b32 v200, 2, v200",
              f"v_add_u32 v200, {QSCR + 256}, v200", f"ds_read_b32 {csv}, v200",
              f"v_mov_b32 {padv}, {sONES}", f"v_cndmask_b32 {padv}, 0, {padv}, vcc",
              f"s_lshl_b32 {sQ}, {sQH}, 6", f"s_add_u32 {sQ}, {sQ}, {sQTB}", f"s_lshl_b32 {sK}, {sQ}, 12",
              f"s_add_u32 {sK}, {sK}, {sLB}", f"s_add_u32 {sK}, {sK}, {KV_OFF}",
              f"s_lshl_b32 {sQ}, {sQ}, 11", f"s_add_u32 {sQ}, {sQ}, {sLB}", f"v_mov_b32 v200, {sONES}",
              "v_mov_b32 v201, 0x3f80"]
        for i in range(16):
            E += [f"v_mul_f32 v{208+i}, v{208+i}, {nrm}", f"v_fma_f32 v{128+i}, v{128+i}, {R}, -v{208+i}"]
        E += self.norm_out(128, KN_OFF, 208, False)
        E += [f"ds_read_b128 {vr(208+4*i)}, {vh} offset:{128+32*i}" for i in range(4)]
        def fixk(d, r):
            return [f"v_cndmask_b32 v{r}, v{r}, v{200 + d - 6}, {sHI}"] if d >= 6 else []
        E += self.pack_store(128, 128, sK, 0, fixk)
        for i in range(16):
            E += [f"v_mul_f32 v{240+i}, v{240+i}, {csv}", f"v_fma_f32 v{160+i}, v{160+i}, v{224+i}, -v{240+i}"]
        E += self.pack_store(160, 160, sK, 2048, lambda d, r: [f"v_cndmask_b32 v{r}, v{r}, {padv}, {sPADM}"])
        main = [[self.q_mm(i)] + (self.q_rd(i + self.QD) if i + self.QD < 84 else []) for i in range(56, 84)]
        A.lines(flat(interleave(main, E, start=0, end=27)))
        self.ts("qkv_p2")
        for i in range(0, 16, 2):
            A(pk("mul", 208 + i, 208 + i, ("b", 202)))
        for i in range(0, 16, 2):
            A(pk("fma", 144 + i, 144 + i, ("b", 206), 208 + i, neg=[0, 0, 1]))
        N = self.norm_out(144, QN_OFF, 208, True)
        A.lines(flat(N[:9]))
        A.lines(self.pack_store(144, 224, sQ, 0, lambda d, r: [f"v_cndmask_b32 v{r}, v{r}, 0, {sHI}"] if d >= 6 else []))
        A.lines(flat(N[9:]))

    def qkv_dump(self):
        A = self.A
        l = self.lab("dump")
        A(f"s_lshl_b32 {sT[2]}, {sAH}, 2")
        A(f"s_add_u32 {sT[2]}, {sT[2]}, {sW}")
        A(f"s_cmp_ge_u32 {sT[2]}, 42")
        A(f"s_cbranch_scc1 {l}")
        keep = list(A.vm)
        A(f"s_lshl_b32 {sT[2]}, {sT[2]}, 11")
        A(f"s_add_u32 {sT[3]}, {sT[2]}, {QKVW}")
        A(f"v_add_u32 v208, {sT[3]}, {vL16}")
        A("ds_read_b128 v[212:215], v208")
        A("ds_read_b128 v[216:219], v208 offset:1024")
        A(f"s_mul_i32 {sT[3]}, {sQH}, 86016")
        A(f"s_add_u32 {sT[2]}, {sT[2]}, {sT[3]}")
        A(f"s_add_u32 {sT[2]}, {sT[2]}, {PK_OFF}")
        A(f"buffer_store_dwordx4 v[212:215], {vL16}, {sWS}, {sT[2]} offen sc1")
        A(f"buffer_store_dwordx4 v[216:219], {vL16}, {sWS}, {sT[2]} offen offset:1024 sc1")
        A.settle()
        A.vm = keep
        A(f"{l}:")

    def qkv_phase(self):
        A = self.A
        A(f"s_cmp_lg_u32 {sLAYER}, 0")
        A("s_cbranch_scc1 L_qkv1")
        A.lines(self.xdma(0))
        A.lines(self.xtouch())
        self.ts("q0_xissued")
        A.lines(self.dma_qkvw_raw())
        self.prologue2()
        self.ts("q0_wissued")
        A("@wait_tag x0")
        A.lines(self.xreads(0))
        A("s_waitcnt lgkmcnt(0)")
        A.lines(self.xdma(1))
        self.ts("q0_x1issued")
        A("@wait_tag wq")
        A("s_barrier")
        self.ts("q0_wq")
        self.flag_init()
        keep = list(A.vm)
        l = self.lab("qcs")
        A(f"s_cmp_eq_u32 {sW}, 3")
        A(f"s_cbranch_scc1 {l}")
        A(f"s_mul_i32 {sT[0]}, {sW}, 28672")
        A(f"s_add_u32 {sT[0]}, {sT[0]}, {QKVW}")
        A(f"v_lshrrev_b32 {vT[2]}, 5, {vL}")
        A(f"v_lshlrev_b32 {vT[2]}, 8, {vT[2]}")
        A(f"v_add3_u32 {vT[2]}, {vT[2]}, {vTQ}, {sT[0]}")
        A.lines(self.colsum(vT[2], lambda ks: ks * 1024, 512, 208, 176, 224))
        A.lines(self.cs_save(208, sW, QSCR, 0))
        A("s_waitcnt lgkmcnt(0)")
        A.settle()
        A.vm = keep
        A(f"{l}:")
        self.ts("q0_cs")
        self.qkv_addr(True)
        self.qkv_p1(True)
        lg = list(A.lg)
        A.wait(vm=0)
        self.qkv_dump()
        A("s_barrier")
        A.settle()
        A("s_branch L_qkv_p2")
        A("L_qkv1:")
        A.lg = []
        self.poll_lines(6, [f"s_lshl_b32 {sT[2]}, {sAH}, 1"], [f"s_mov_b64 {sPM}, 0x7f7f"], bias=0)
        self.ts("qkv_polled")
        B = self.frag_loads(lambda i: vr(16 + 4 * i),
                            [f"s_mul_i32 {sT[2]}, {sQTB}, 28672", f"s_add_u32 {sT[2]}, {sT[2]}, {LB0 + XO_OFF}"], 28)
        U = self.opt.get("qU", 8)
        A.lines(flat(B[:U]))
        self.qkv_addr(False)
        rest = []
        for g in B[U:]:
            rest += [g, []]
        S = self.stats_loads(LB0 + SO_OFF, sQTB, 224)
        self.qkv_p1(False, rest + S)
        A.lines(self.stats_sum(224, "v200", "v201"))
        A.wait(vm=0)
        A.settle()
        assert len(A.lg) <= len(lg)
        A.lg = lg
        A("L_qkv_p2:")
        self.ts("qkv_p1")
        self.qkv_p2()
        self.ts("qkv_epi")
        self.signal(0)
        self.ts("qkv_sig")
        l = self.lab("res")
        A(f"s_cmp_lg_u32 {sLAYER}, 0")
        A(f"s_cbranch_scc1 {l}")
        self.resid_load()
        self.poll([f"v_mov_b32 {vT[0]}, {vL4}"], [f"s_mov_b64 {sPM}, -1"], srd=sDBG, eq=4, barrier=False)
        A(f"{l}:")
        self.phase_end("qkv")

    def attention(self):
        A = self.A
        self.poll_simple(0, sAH, 16)
        self.ts("att_polled")
        Q, S, P, O = 16, 176, 80, 96
        RD = self.opt.get('ring', 6)
        KV = lambda kt, j: ar(16 * (kt % RD) + 4 * j)
        sKV = sT[7]
        A(f"s_lshl_b32 {sT[2]}, {sAH}, 9")
        A(f"s_add_u32 {sT[2]}, {sT[2]}, {sLB}")
        A(f"s_add_u32 {sT[4]}, {sT[2]}, {KN_OFF}")
        A(f"v_lshlrev_b32 {vT[0]}, 3, {vL}")
        A(f"buffer_load_dwordx2 v[160:161], {vT[0]}, {sWS}, {sT[4]} offen sc1")
        A(f"s_lshl_b32 {sT[4]}, {sAQB}, 5")
        A(f"s_add_u32 {sT[4]}, {sT[4]}, {sT[2]}")
        A(f"s_add_u32 {sT[4]}, {sT[4]}, {QN_OFF}")
        A(f"v_and_b32 {vT[1]}, 28, {vL4}")
        A(f"buffer_load_dword v162, {vT[1]}, {sWS}, {sT[4]} offen sc1")
        A(f"s_lshl_b32 {sKV}, {sAH}, 6")
        A(f"s_lshl_b32 {sT[2]}, {sW}, 4")
        A(f"s_add_u32 {sKV}, {sKV}, {sT[2]}")
        A(f"s_lshl_b32 {sKV}, {sKV}, 12")
        A(f"s_add_u32 {sKV}, {sKV}, {sLB}")
        A(f"s_add_u32 {sKV}, {sKV}, {KV_OFF}")
        A(f"s_mov_b32 {sT[6]}, {sKV}")
        def kvload(kt, j):
            L = []
            if j == 0 and kt > 0:
                L.append(f"s_add_u32 {sKV}, {sKV}, 4096")
            L.append(f"buffer_load_dwordx4 {KV(kt, j)}, {vL16}, {sWS}, {sKV} offen offset:{1024*j} sc1 @kv{kt}")
            return L
        A.lines(kvload(0, 0) + kvload(0, 1))
        A(f"s_lshl_b32 {sT[2]}, {sAH}, 6")
        A(f"s_lshl_b32 {sT[3]}, {sAQB}, 2")
        A(f"s_add_u32 {sT[2]}, {sT[2]}, {sT[3]}")
        for j in range(4):
            A(f"s_add_u32 {sT[3]}, {sW}, {j}")
            A(f"s_and_b32 {sT[3]}, {sT[3]}, 3")
            A(f"s_add_u32 {sT[3]}, {sT[3]}, {sT[2]}")
            A(f"s_lshl_b32 {sT[3]}, {sT[3]}, 11")
            A(f"s_add_u32 {sT[3]}, {sT[3]}, {sLB}")
            for k in range(2):
                A(f"buffer_load_dwordx4 {vr(Q+8*j+4*k)}, {vL16}, {sWS}, {sT[3]} offen offset:{1024*k} sc1")
            if j == 1:
                A.lines(kvload(0, 2) + kvload(0, 3))
        for i in range(0, 64, 2):
            A(f"v_pk_mov_b32 {vr(O+i,2)}, 0, 0")
        A("v_max_f32 v160, v160, v161")
        for r in (8, 4, 2, 1):
            A(f"v_max_f32_dpp v160, v160, v160 row_ror:{r} row_mask:0xf bank_mask:0xf")
            if r < 8:
                A(f"v_max_f32_dpp v162, v162, v162 row_ror:{r} row_mask:0xf bank_mask:0xf")
        A("v_mov_b32 v161, v160")
        A("v_permlane16_swap_b32 v160, v161")
        A("v_max_f32 v160, v160, v161")
        A("v_mov_b32 v161, v160")
        A("v_permlane32_swap_b32 v160, v161")
        A("v_max_f32 v160, v160, v161")
        A("v_mul_f32 v160, v160, v162")
        A(f"v_cmp_nge_f32 vcc, {sC[5]}, v160")
        lf = self.lab("fast")
        if not self.force_fallback:
            A.settle()
            A(f"s_cbranch_vccz {lf}")
        saved = (list(A.vm), list(A.lg))
        self.att_fallback(Q, S)
        A.vm, A.lg = saved
        A(f"{lf}:")
        def unit(u):
            kt, j = divmod(u, 4)
            if kt == 15:
                j = (j + 1) % 4
            return kt, j
        def smm(u, k):
            kt, j = unit(u)
            s = vr(S + 16 * (u % 3), 16)
            L = [f"@wait_tag kv{kt}"] if (u % 4 == 0 and k == 0 and kt > 2 and self.opt.get("onewait", 1)) else []
            return L + [f"{MF} {s}, {KV(kt, k)}, {vr(Q+8*j+4*k)}, {s if k else '0'}"]
        def pv(u, k):
            kt, j = unit(u)
            o = vr(O + 16 * j, 16)
            return f"{MF} {o}, {KV(kt, 2+k)}, {vr(P+4*k)}, {o}"
        def ex(u, g):
            s = S + 16 * (u % 3)
            return [f"v_exp_f32 v{s+4*g+i}, v{s+4*g+i}" for i in range(4)]
        def cv(u, g):
            s = S + 16 * (u % 3)
            return [f"v_cvt_pk_bf16_f32 v{P+2*g+i}, v{s+4*g+2*i}, v{s+4*g+2*i+1}" for i in range(2)]
        def redw(j):
            L = [f"s_add_u32 {sT[2]}, {sW}, {j}", f"s_and_b32 {sT[2]}, {sT[2]}, 3", f"s_mul_i32 {sT[2]}, {sT[2]}, 12288",
                 f"s_add_u32 {sT[2]}, {sT[2]}, {LC + (j-1)*4096}", f"v_add_u32 {vT[j-1]}, {sT[2]}, {vL16}"]
            return L, [f"ds_write_b128 {vT[j-1]}, {vr(O+16*j+4*i)} offset:{1024*i}" for i in range(4)]
        extra = {u: [] for u in range(64)}
        col = [f"s_lshl_b32 {sT[3]}, {sFT}, 7"]
        widx = [f"s_lshl_b32 {sT[3]}, {sSLOT}, 2", f"s_add_u32 {sT[3]}, {sT[3]}, {sW}"]
        pf = (self.dma_tile64(sWO, 896, col, LA, vDM) + self.dma_tile64(sW1, 896, col, LBB, vDM)
              )
        warm = self.warm(sW2, widx, 4, 3136, 64) + self.warm(sW3, widx, 13, 12544, 64)
        if self.opt.get("warm", 1):
            pf = pf + warm
        for i, g in enumerate(pf):
            extra[16 + (i * 43) // len(pf)] += g
        A.lines(smm(0, 0))
        A.lines(smm(0, 1))
        self.ts("att_first")
        wr = {}
        pend = [kvload(kt, j) for kt in range(1, 16) for j in range(4)]
        issued = 0
        def more(u, slot):
            nonlocal issued
            if issued >= len(pend):
                return []
            kt, j = divmod(issued + 4, 4)
            if kt >= RD and (u, slot) < (4 * (kt - RD + 1), 2):
                return []
            behind = issued < u + 4 * (RD - 2)
            if slot == 2 or behind:
                issued += 1
                return pend[issued - 1]
            return []
        for u in range(64):
            kt, j = divmod(u, 4)
            if u + 1 < 64:
                A.lines(smm(u + 1, 0))
            if u > 0:
                A.lines(cv(u - 1, 3))
            A.lines(more(u, 0) if u < 2 else [])
            A.lines(ex(u, 0))
            if u + 1 < 64:
                A.lines(smm(u + 1, 1))
            A.lines(cv(u, 0))
            A.lines(more(u, 1))
            A.lines(extra[u])
            A.lines(wr.pop(u, []))
            A.lines(ex(u, 1))
            if u > 0:
                A(pv(u - 1, 1))
            A.lines(cv(u, 1))
            A.lines(more(u, 2))
            A.lines(ex(u, 2))
            A(pv(u, 0))
            A.lines(cv(u, 2))
            if u >= 61:
                a, w_ = redw(u - 60)
                A.lines(a)
                if u < 63:
                    wr[u + 1] = w_
                else:
                    last_w = w_
            A.lines(ex(u, 3))
        assert issued == len(pend)
        A.lines(last_w[:2])
        A.lines(cv(63, 3))
        A.lines(last_w[2:])
        A(pv(63, 1))
        self.ts("att_main")
        A(f"s_mul_i32 {sT[2]}, {sW}, 12288")
        A(f"s_add_u32 {sT[2]}, {sT[2]}, {LC}")
        A(f"v_add_u32 {vT[3]}, {sT[2]}, {vL16}")
        A("s_waitcnt lgkmcnt(0)")
        A("s_barrier")
        for j in range(3):
            for i in range(4):
                A(f"ds_read_b128 {vr(160+16*j+4*i)}, {vT[3]} offset:{4096*j+1024*i}")
        A(f"s_lshl_b32 {sT[2]}, {sAQB}, 2")
        A(f"s_add_u32 {sT[2]}, {sT[2]}, {sW}")
        A(f"s_lshl_b32 {sT[2]}, {sT[2]}, 15")
        A(f"s_lshl_b32 {sT[3]}, {sAH}, 11")
        A(f"s_add_u32 {sT[2]}, {sT[2]}, {sT[3]}")
        A(f"s_add_u32 {sT[2]}, {sT[2]}, {sLB}")
        A(f"s_add_u32 {sT[2]}, {sT[2]}, {O_OFF}")
        for j in range(3):
            for i in range(0, 16, 2):
                A(pk("add", O + i, O + i, 160 + 16 * j + i))
        A(f"v_mov_b32 {vT[0]}, v{O+12}")
        A(f"v_mov_b32 {vT[2]}, v{O+12}")
        A(f"v_permlane32_swap_b32 {vT[0]}, {vT[2]}")
        A(f"v_rcp_f32 {vT[2]}, {vT[2]}")
        for i in range(0, 16, 2):
            A(pk("mul", O + i, O + i, ("b", 12)))
        A.lines(self.pack_store(O, 16, sT[2], 0, lambda d, r: [f"v_cndmask_b32 v{r}, v{r}, 0, {sHI}"] if d >= 6 else []))
        self.ts("att_epi")
        self.signal(1)
        self.ts("att_sig")
        self.phase_end("att")

    def att_fallback(self, Q, S):
        A = self.A
        A.join()
        M = 164
        for j in range(4):
            A(f"v_mov_b32 v{M+j}, 0xff800000")
        A(f"s_mov_b32 {sT[5]}, 0")
        A(f"s_mov_b32 {sT[4]}, {sT[6]}")
        A.settle()
        l = self.lab("fb")
        A(f"{l}:")
        A(f"buffer_load_dwordx4 v[168:171], {vL16}, {sWS}, {sT[4]} offen sc1")
        A(f"buffer_load_dwordx4 v[172:175], {vL16}, {sWS}, {sT[4]} offen offset:1024 sc1")
        for j in range(4):
            s = vr(S, 16)
            A(f"{MF} {s}, v[168:171], {vr(Q+8*j)}, 0")
            A(f"{MF} {s}, v[172:175], {vr(Q+8*j+4)}, {s}")
            for i in range(8):
                A(f"v_max3_f32 v{M+j}, v{M+j}, v{S+2*i}, v{S+2*i+1}")
        A(f"s_add_u32 {sT[4]}, {sT[4]}, 4096")
        A(f"s_add_u32 {sT[5]}, {sT[5]}, 1")
        A(f"s_cmp_lt_u32 {sT[5]}, 16")
        A.join()
        A(f"s_cbranch_scc1 {l}")
        for j in range(4):
            A(f"v_mov_b32 {vT[0]}, v{M+j}")
            A(f"v_permlane32_swap_b32 {vT[0]}, v{M+j}")
            A(f"v_max_f32 v{M+j}, v{M+j}, {vT[0]}")
            A(f"s_add_u32 {sT[2]}, {sW}, {j}")
            A(f"s_and_b32 {sT[2]}, {sT[2]}, 3")
            A(f"s_lshl_b32 {sT[2]}, {sT[2]}, 10")
            A(f"s_add_u32 {sT[2]}, {sT[2]}, {LC}")
            A(f"v_add_u32 v{168+j}, {sT[2]}, {vL4}")
            A(f"s_lshl_b32 {sT[3]}, {sW}, 8")
            A(f"v_add_u32 {vT[1]}, {sT[3]}, v{168+j}")
            A(f"ds_write_b32 {vT[1]}, v{M+j}")
        A("s_waitcnt lgkmcnt(0)")
        A("s_barrier")
        for j in range(4):
            for w in range(4):
                A(f"ds_read_b32 v{S+4*j+w}, v{168+j} offset:{256*w}")
        for j in range(4):
            b = S + 4 * j
            A(f"v_max3_f32 v{b}, v{b}, v{b+1}, v{b+2}")
            A(f"v_max_f32 v{b}, v{b}, v{b+3}")
            A(f"v_sub_f32 v{b}, 0, v{b}")
            A(f"v_and_b32 v{b+1}, 0xffff0000, v{b}")
            A(f"v_sub_f32 v{b}, v{b}, v{b+1}")
            A(f"v_and_b32 v{b+2}, 0xffff0000, v{b}")
            A(f"v_sub_f32 v{b}, v{b}, v{b+2}")
            A(f"v_lshrrev_b32 v{b}, 16, v{b}")
            A(f"v_lshrrev_b32 v{b+1}, 16, v{b+1}")
            A(f"v_or_b32 v{b+1}, v{b+1}, v{b+2}")
            A(f"v_cndmask_b32 v{Q+8*j+6}, v{Q+8*j+6}, v{b+1}, {sHI}")
            A(f"v_cndmask_b32 v{Q+8*j+7}, v{Q+8*j+7}, v{b}, {sHI}")
        A.join()
        A("s_barrier")

    def small_pre(self, slot, nks, k4_of):
        A = self.A
        a0, a1 = vT[0], vT[1]
        khstride = k4_of(nks) * 512
        A(f"s_mul_i32 {sT[2]}, {sKH}, {khstride + 256}")
        A(f"s_add_u32 {sT[2]}, {sT[2]}, {slot}")
        A(f"v_add_u32 {a0}, {sT[2]}, {vTR}")
        A(f"v_xor_b32 {a1}, 256, {a0}")
        for k in range(nks):
            for j in range(2):
                A.lines(self.tr(("a", 8 * k + 4 * j), a1 if j else a0, k4_of(k) * 512, 1024))

    def small_main(self, nks, B, late, dma, shadow=None, post=None):
        A = self.A
        U = self.opt.get("sU", 8)
        A.lines(flat(B[:U]))
        q = list(B[U:]) + list(late)
        dma = list(dma)
        nd1 = self.opt.get("sD1", 5)
        mm = []
        for k in range(nks):
            for j in (1, 0):
                acc = vr(128 + 16 * j, 16)
                g = [f"{MF} {acc}, {ar(8*k+4*j)}, {vr(16+4*k)}, {acc if k else '0'}"]
                if q:
                    g += q.pop(0)
                elif nd1 and 2 * k >= nks:
                    g += dma.pop(0)
                    nd1 -= 1
                mm.append(g)
        fine = self.opt.get("fine", 0)
        A.lines(flat(mm[:1]))
        if fine:
            self.ts("s_first")
        A.lines(flat(mm[1:nks]))
        if fine:
            self.ts("s_half")
        A.lines(flat(mm[nks:]) + flat(q))
        if fine:
            self.ts("s_mfma")
        A(f"s_lshl_b32 {sT[2]}, {sW}, 12")
        A(f"s_add_u32 {sT[2]}, {sT[2]}, {LC}")
        A(f"v_add_u32 {vT[0]}, {sT[2]}, {vL16}")
        A(f"v_xor_b32 {vT[1]}, 8192, {vT[0]}")
        for i in range(4):
            A(f"ds_write_b128 {vT[0]}, {vr(144+4*i)} offset:{1024*i}")
        nd2 = self.opt.get("sD2", 3)
        A.lines(flat(dma[:nd2]))
        dma = dma[nd2:]
        A.lines(shadow or [])
        A("s_waitcnt lgkmcnt(0)")
        if fine:
            self.ts("s_prebar")
        A("s_barrier")
        if fine:
            self.ts("s_bar")
        for i in range(4):
            A(f"ds_read_b128 {vr(160+4*i)}, {vT[1]} offset:{1024*i}")
        A.lines(post or [])
        for i in range(0, 16, 2):
            A(pk("add", 128 + i, 128 + i, 160 + i))
        return dma

    def wo_phase(self):
        A = self.A
        self.small_pre(LA, 16, lambda k: 7 * (k >> 1) + 4 * (k & 1))
        l = self.lab("wocs")
        A(f"s_cmp_lg_u32 {sLAYER}, 0")
        A(f"s_cbranch_scc1 {l}_1")
        self.resid_unpack()
        A(f"s_lshl_b32 {sT[2]}, {sKH}, 8")
        A(f"s_add_u32 {sT[2]}, {sT[2]}, {LBB}")
        A(f"v_add_u32 {vT[2]}, {sT[2]}, {vTR}")
        A.lines(self.colsum(vT[2], lambda ks: ks * 2048, 1024, 208, 176, 224))
        A.lines(self.cs_save(208, sKH, W1SCR, 1536))
        A.settle()
        A(f"s_branch {l}_2")
        A(f"{l}_1:")
        A.lines(self.cs_restore(512, W3SCR, 32))
        A.lines(self.cs_restore(1536, W1SCR, 16))
        A.settle()
        A(f"{l}_2:")
        self.ts("wo_pre")
        A(f"s_lshr_b32 {sT[7]}, {sTB64}, 1")
        self.poll_simple(1, sT[7], 16)
        self.ts("wo_polled")
        B = self.frag_loads(lambda i: vr(16 + 4 * i),
                            [f"s_lshl_b32 {sT[2]}, {sTB32}, 15", f"s_lshl_b32 {sT[4]}, {sKH}, 14",
                             f"s_add_u32 {sT[2]}, {sT[2]}, {sT[4]}", f"s_add_u32 {sT[2]}, {sT[2]}, {sLB}",
                             f"s_add_u32 {sT[2]}, {sT[2]}, {O_OFF}"], 16)
        dma = self.dma_tile64(sW2, 896, [f"s_lshl_b32 {sT[3]}, {sFT}, 7"], LA, vDM)
        sh = [f"v_accvgpr_read_b32 v{176+i}, a{aRES+i}" for i in range(16)]
        sh += [pk("add", 128 + i, 128 + i, 176 + i) for i in range(0, 16, 2)]
        dma = self.small_main(16, B, [], dma, sh, self.tile_off(XM_OFF, sT[2]))
        self.ts("wo_main")
        A.lines(self.pack_store(128, 16, sT[2]))
        A.lines(self.stats_out(128, SM_OFF, 24))
        self.ts("wo_epi")
        self.signal(2, dma + [f"v_accvgpr_write_b32 a{aRES+i}, v{128+i}" for i in range(16)])
        self.ts("wo_sig")
        self.phase_end("wo")

    def act_base(self, off):
        return [f"s_mul_i32 {sT[2]}, {sTB32}, 28672", f"s_mul_i32 {sT[4]}, {sKH}, 14336",
                f"s_add_u32 {sT[2]}, {sT[2]}, {sT[4]}", f"s_add_u32 {sT[2]}, {sT[2]}, {sLB}",
                f"s_add_u32 {sT[2]}, {sT[2]}, {off}"]

    def w1_phase(self):
        A = self.A
        self.small_pre(LBB, 14, lambda k: 4 * k)
        A.lines(self.dm_lane(vT[4], 3584))
        A(f"s_lshl_b32 {sT[2]}, {sKH}, 7")
        A(f"s_add_u32 {sT[2]}, {sT[2]}, {W1SCR}")
        A(f"v_lshrrev_b32 {vT[2]}, 5, {vL}")
        A(f"v_lshlrev_b32 {vT[2]}, 4, {vT[2]}")
        A(f"v_add_u32 {vT[2]}, {sT[2]}, {vT[2]}")
        for i in range(4):
            A(f"ds_read_b128 {vr(208+4*i)}, {vT[2]} offset:{32*i}")
        self.ts("w1_pre")
        self.poll_simple(2, sTB64, 7)
        self.ts("w1_polled")
        A(f"s_add_u32 {sT[7]}, {sLB}, {SM_OFF}")
        B = self.frag_loads(lambda i: vr(16 + 4 * i), self.act_base(XM_OFF), 14)
        S = self.stats_loads(sT[7], sTB32, 224)
        S = [S[i] + S[i + 1] for i in range(0, 14, 2)]
        dma = self.dma_tile64(sW3, 3584, [f"s_lshl_b32 {sT[3]}, {sF3}, 8"], LBB, vT[4])
        s1, s2, var, R, ka, kb, iR = "v240", "v241", "v242", "v243", 244, 246, 248
        sh = self.stats_sum(224, s1, s2) + self.stats_fin(s1, s2, vM, var)
        sh += [f"v_add_f32 {s1}, {sC[1]}, {var}", f"v_rsq_f32 {vR1}, {s1}", f"v_mul_f32 {var}, {var}, {vR1}",
               f"v_fma_f32 {var}, {var}, {vR1}, {sC[1]}", f"v_rsq_f32 {R}, {var}", f"v_mul_f32 {R}, {R}, {vR1}"]
        sh += self.gelu_consts(R, ka, kb, iR)
        dma = self.small_main(14, B, S, dma, sh, self.tile_off(H_OFF, sT[2]))
        self.ts("w1_main")
        g = self.gelu_pre(128, 208, 160, 8, ka, kb) + self.gelu_post(128, 160, iR, True)
        A.lines(flat(interleave(g, dma[:self.opt.get("w1D3", 6)])))
        dma = dma[self.opt.get("w1D3", 6):]
        A.lines(self.pack_store(128, 16, sT[2]))
        self.ts("w1_epi")
        self.signal(3, dma + ["s_nop 0"])
        self.ts("w1_sig")
        self.phase_end("w1")

    def w2_phase(self):
        A = self.A
        self.small_pre(LA, 14, lambda k: 4 * k)
        for gi in range(2):
            d, t = f"v{240+gi}", vT[2]
            A(f"s_add_u32 {sT[2]}, {sKH}, 1")
            if gi == 0:
                A(f"s_sub_u32 {sT[2]}, 0, {sT[2]}")
            A(f"s_lshl_b32 {sT[3]}, {sTB32}, 5")
            A(f"s_add_u32 {sT[2]}, {sT[2]}, {sT[3]}")
            A(f"v_and_b32 {t}, 31, {vL}")
            A(f"v_add_u32 {t}, {sT[2]}, {t}")
            A(f"v_cmp_gt_u32 vcc, 0x800, {t}")
            A(f"v_lshrrev_b32 {d}, 5, {t}")
            A(f"v_mul_u32_u24 {d}, 28672, {d}")
            A(f"v_and_b32 {t}, 31, {t}")
            A(f"v_lshlrev_b32 {t}, 4, {t}")
            A(f"v_add_u32 {d}, {d}, {t}")
            A(f"v_lshrrev_b32 {t}, 5, {vL}")
            A(f"v_lshlrev_b32 {t}, 9, {t}")
            A(f"v_add_u32 {d}, {d}, {t}")
            A(f"v_mov_b32 {t}, {OOB}")
            A(f"v_cndmask_b32 {d}, {t}, {d}, vcc")
        A.lines(self.dm_lane(vT[4], 3584))
        for i in range(16):
            A(f"v_accvgpr_read_b32 v{208+i}, a{aRES+i}")
        A(f"v_mov_b32 {vT[2]}, {vR1}")
        for i in range(0, 16, 2):
            A(pk("add", 224 + i, 208 + i, ("b", 8), neg=[0, 1]))
        for i in range(0, 16, 2):
            A(pk("mul", 224 + i, 224 + i, ("b", 12)))
        self.ts("w2_pre")
        self.poll_lines(3, [f"s_sub_u32 {sT[2]}, {sTB64}, 1"],
                        ["s_mov_b32 s86, 0x7f7f7f", f"s_cmp_eq_u32 {sTB64}, 0", f"s_cselect_b32 s86, 0x7f7f00, s86",
                         f"s_cmp_eq_u32 {sTB64}, 31", f"s_cselect_b32 s86, 0x7f7f, s86", "s_mov_b32 s87, 0"])
        self.ts("w2_polled")
        B = self.frag_loads(lambda i: vr(16 + 4 * i),
                            [f"s_mul_i32 {sT[2]}, {sKH}, 14336", f"s_add_u32 {sT[2]}, {sT[2]}, {sLB}",
                             f"s_add_u32 {sT[2]}, {sT[2]}, {H_OFF}"], 14, vaddr=lambda i: f"v{240 + i//7}")
        dma = self.dma_tile64(sW3, 3584, [f"s_lshl_b32 {sT[3]}, {sF3}, 8", f"s_add_u32 {sT[3]}, {sT[3]}, 128"], LA, vT[4])
        sh = [pk("add", 128 + i, 128 + i, 224 + i) for i in range(0, 16, 2)]
        dma = self.small_main(14, B, [], dma, sh, self.tile_off(X1_OFF, sT[2]))
        self.ts("w2_main")
        A.lines(self.pack_store(128, 16, sT[2]))
        A.lines(self.stats_out(128, S1_OFF, 24))
        self.ts("w2_epi")
        aft = [pk("add", 208 + i, 208 + i, 128 + i) for i in range(0, 16, 2)]
        aft += [f"v_accvgpr_write_b32 a{aRES+i}, v{208+i}" for i in range(16)]
        self.signal(4, dma + aft)
        self.ts("w2_sig")
        self.phase_end("w2")

    @staticmethod
    def w4_page(i):
        if i < 5:
            return 0, i
        if i < 12:
            return 1, i - 5
        if i < 19:
            return 2, i - 12
        if i < 24:
            return 0, i - 19
        return 1, i - 24

    W4REG = ((LC, 10240), (LBB, 14336), (LA, 14336))

    def w4_dma(self, steps):
        G = []
        last = None
        for i in steps:
            reg, pg = self.w4_page(i)
            base, stride = self.W4REG[reg]
            for hf in range(2):
                L = []
                if reg != last:
                    L += [f"s_mul_i32 s63, {sW}, {stride}"]
                    last = reg
                L += [f"s_add_u32 {sT[3]}, {sG4}, {(16*i + 8*hf)*896}", f"s_add_u32 m0, s63, {base + pg*2048 + hf*1024}",
                      f"buffer_load_dwordx4 {vDM}, {sW4}, {sT[3]} offen lds @w4_{i}"]
                G.append(L)
        return G

    def w3_phase(self):
        A = self.A
        l = self.lab("w3cs")
        A(f"s_cmp_lg_u32 {sLAYER}, 0")
        A(f"s_cbranch_scc1 {l}")
        A("s_waitcnt vmcnt(0)")
        A("s_barrier")
        A(f"s_cmp_lt_u32 {sW}, 2")
        A(f"s_cselect_b32 {sT[2]}, {LBB}, {LA}")
        A(f"s_lshl_b32 {sT[3]}, {sNI}, 8")
        A(f"s_add_u32 {sT[2]}, {sT[2]}, {sT[3]}")
        A(f"v_add_u32 {vT[2]}, {sT[2]}, {vTR}")
        A.lines(self.colsum(vT[2], lambda ks: ks * 2048, 1024, 208, 176, 224))
        A.lines(self.cs_save(208, sW, W3SCR, 512))
        A.settle()
        A(f"{l}:")
        vB_, vA_, vS_ = "v250", "v251", "v252"
        A(f"v_lshrrev_b32 {vS_}, 5, {vL}")
        A(f"v_lshlrev_b32 {vS_}, 4, {vS_}")
        A(f"v_add_u32 {vS_}, {W3SCR}, {vS_}")
        A(f"v_add_u32 {vB_}, {LBB}, {vTR}")
        A(f"v_add_u32 {vA_}, {LA}, {vTR}")
        A(f"s_mul_i32 {sG4}, {sW}, {448*896}")
        A(f"s_lshl_b32 {sT[3]}, {sFT}, 7")
        A(f"s_add_u32 {sG4}, {sG4}, {sT[3]}")
        self.ts("w3_pre")
        self.poll_lines(4, [f"s_lshl_b32 {sT[2]}, {sT128}, 1"], [f"s_mov_b64 {sPM}, 0x7f7f"])
        self.ts("w3_polled")
        sTB, sO = sT[7], sT[1]
        A(f"s_lshl_b32 {sTB}, {sT128}, 2")
        A(f"s_add_u32 {sTB}, {sTB}, {sW}")
        B = self.frag_loads(lambda i: ar(4 * i),
                            [f"s_mul_i32 {sT[2]}, {sTB}, 28672", f"s_add_u32 {sT[2]}, {sT[2]}, {sLB}",
                             f"s_add_u32 {sT[2]}, {sT[2]}, {X1_OFF}"], 28)
        U = self.opt.get("w3U", 8)
        A.lines(flat(B[:U]))
        A(f"s_add_u32 {sT[6]}, {sLB}, {S1_OFF}")
        S = self.stats_loads(sT[6], sTB, 224)
        A(f"s_mul_i32 {sO}, {sTB}, 114688")
        A(f"s_lshl_b32 {sT[3]}, {sF3}, 13")
        A(f"s_add_u32 {sO}, {sO}, {sT[3]}")
        A(f"s_add_u32 {sO}, {sO}, {sLB}")
        A(f"s_add_u32 {sO}, {sO}, {G_OFF}")
        seq = [(i & 1, i >> 1) for i in range(56)] + [(mt, ks) for mt in (2, 3) for ks in range(28)]
        ACC, STG, CS, WB, PT = 16, 80, (112, 128), (144, 160), 176
        D = 6
        def rd(i):
            if i >= 112:
                return []
            mt, ks = seq[i]
            return self.tr(("v", STG + 4 * (i % 8)), vB_ if mt < 2 else vA_, (mt & 1) * 256 + ks * 2048, 1024)
        def mm(i):
            mt, ks = seq[i]
            acc = vr(ACC + 16 * mt, 16)
            return [f"{MF} {acc}, {vr(STG+4*(i%8))}, {ar(4*ks)}, {acc if ks else '0'}"] + rd(i + D)
        def csrd(mt):
            return [f"ds_read_b128 {vr(CS[mt&1]+4*i)}, {vS_} offset:{128*mt+32*i}" for i in range(4)]
        s1, s2, var, R, m, ka, kb, iR = "v240", "v241", "v242", "v243", 244, 246, 248, 238
        def pre(mt):
            return self.gelu_pre(ACC + 16 * mt, CS[mt & 1], WB[mt & 1], m, ka, kb)
        def post(mt, packed):
            L = self.gelu_post(ACC + 16 * mt, WB[mt & 1], iR, packed)
            if mt == 2:
                L.append(f"s_add_u32 {sO}, {sO}, 4096")
            return L + self.pack_store(ACC + 16 * mt, PT + 8 * (mt & 1), sO, (mt & 1) * 2048)
        for i in range(D):
            A.lines(rd(i))
        q = []
        for g in B[U:]:
            q += [g, []]
        q += [S[i] + S[i + 1] for i in range(0, 14, 2)]
        dC = self.w4_dma(range(5))
        st = self.stats_sum(224, s1, s2) + self.stats_fin(s1, s2, f"v{m}", var)
        st += [f"v_add_f32 {var}, {sC[1]}, {var}", f"v_rsq_f32 {R}, {var}"] + self.gelu_consts(R, ka, kb, iR)
        for i in range(56):
            A.lines(mm(i))
            if q:
                A.lines(q.pop(0))
            elif dC:
                A.lines(dC.pop(0))
        A.lines(csrd(0) + csrd(1))
        A.lines(flat(dC))
        A.lines(st)
        self.ts("w3_p1")
        A("s_barrier")
        A.lines(pre(0) + pre(1))
        A.lines(csrd(2))
        dB = self.w4_dma(range(5, 12))
        f = post(0, False) + post(1, False)
        f = interleave(f, dB[:8])
        A.lines(flat(interleave([mm(i) for i in range(56, 84)], f, end=27)))
        self.ts("w3_p2")
        A.lines(csrd(3))
        A.lines(pre(2))
        f = interleave(post(2, False), dB[8:])
        A.lines(flat(interleave([mm(i) for i in range(84, 112)], f, end=27)))
        self.ts("w3_p3")
        A("s_barrier")
        A.lines(pre(3) + post(3, True))
        self.ts("w3_epi")
        self.signal(5, self.w4_dma(range(12, 19)))
        self.ts("w3_sig")
        self.phase_end("w3")

    def w4_phase(self):
        A = self.A
        AD = 224
        for r, (base, stride) in enumerate(self.W4REG):
            A(f"s_mul_i32 {sT[2]}, {sW}, {stride}")
            A(f"s_lshl_b32 {sT[3]}, {sKH}, 8")
            A(f"s_add_u32 {sT[2]}, {sT[2]}, {sT[3]}")
            A(f"s_add_u32 {sT[2]}, {sT[2]}, {base}")
            A(f"v_add_u32 v{AD+2*r}, {sT[2]}, {vTR}")
            A(f"v_xor_b32 v{AD+2*r+1}, 256, v{AD+2*r}")
        sB = [sT[6], sT[7]]
        A(f"s_lshr_b32 {sT[7]}, {sTB64}, 1")
        self.poll_simple(5, sT[7], 14)
        self.ts("w4_polled")
        for jb in range(2):
            A(f"s_xor_b32 {sB[jb]}, {sTB32}, {jb}")
            A(f"s_mul_i32 {sB[jb]}, {sB[jb]}, 114688")
            A(f"s_mul_i32 {sT[4]}, {sW}, 28672")
            A(f"s_add_u32 {sB[jb]}, {sB[jb]}, {sT[4]}")
            A(f"s_add_u32 {sB[jb]}, {sB[jb]}, {sLB}")
            A(f"s_add_u32 {sB[jb]}, {sB[jb]}, {G_OFF}")
        def breg(i, jb):
            return vr(16 + 8 * (i % 14) + 4 * jb)
        def bload(i):
            G = []
            for jb in range(2):
                L = []
                if i and i % 4 == 0:
                    L.append(f"s_add_u32 {sB[jb]}, {sB[jb]}, 4096")
                L.append(f"buffer_load_dwordx4 {breg(i, jb)}, {vL16}, {sWS}, {sB[jb]} offen offset:{(i%4)*1024} sc1")
                G.append(L)
            return G
        PB = self.opt.get("w4PB", 6)
        for i in range(PB):
            A.lines(flat(bload(i)))
        def rd(i):
            G = []
            reg, pg = self.w4_page(i)
            for ja in range(2):
                L = [f"@wait_tag w4_{i}"] if i >= 19 and ja == 0 else []
                G.append(L + self.tr(("v", 192 + 8 * (i % 4) + 4 * ja), f"v{AD+2*reg+ja}", pg * 2048, 1024))
            return G
        D = 3
        for i in range(D):
            A.lines(flat(rd(i)))
        refill = {i + 1: 19 + i for i in range(5)}
        refill.update({6 + i: 24 + i for i in range(4)})
        for i in range(28):
            mms = []
            order = (0, 1, 2, 3) if i < 27 else (1, 2, 3, 0)
            for j in order:
                ja, jb = j >> 1, j & 1
                acc = vr(128 + 16 * j, 16)
                mms.append(f"{MF} {acc}, {vr(192+8*(i%4)+4*ja)}, {breg(i, jb)}, {acc if i else '0'}")
            fill = []
            if i + PB < 28:
                fill += bload(i + PB)
            if i in refill:
                fill += self.w4_dma([refill[i]])
            if i + D < 28:
                fill += rd(i + D)
            A.lines(flat(interleave(mms, fill)))
        self.ts("w4_main")
        A(f"s_mul_i32 {sT[2]}, {sW}, 14336")
        A(f"v_add_u32 {vT[0]}, {sT[2]}, {vL16}")
        for j in (1, 2, 3):
            A(f"s_xor_b32 {sT[2]}, {sW}, {j}")
            A(f"s_mul_i32 {sT[2]}, {sT[2]}, 14336")
            A(f"v_add_u32 {vT[j]}, {sT[2]}, {vL16}")
        for i in range(16):
            A(f"v_accvgpr_read_b32 v{64+i}, a{aRES+i}")
        for j in (1, 2, 3):
            for i in range(4):
                A(f"ds_write_b128 {vT[0]}, {vr(128+16*j+4*i)} offset:{LA + (j-1)*4096 + 1024*i}")
        for i in range(0, 16, 2):
            A(pk("add", 128 + i, 128 + i, 64 + i))
        A("s_waitcnt lgkmcnt(0)")
        A("s_barrier")
        for j in (1, 2, 3):
            for i in range(4):
                A(f"ds_read_b128 {vr(16*j+4*i)}, {vT[j]} offset:{LA + (j-1)*4096 + 1024*i}")
        for j in (1, 2, 3):
            for i in range(0, 16, 2):
                A(pk("add", 128 + i, 128 + i, 16 * j + i))
        A.join()
        A(f"s_cmp_lg_u32 {sLAYER}, 0")
        A("s_cbranch_scc1 L_final")
        dq = self.dma_qkvw_packed()
        nq = self.opt.get("w4Q", 6)
        e = self.tile_off(XO_OFF, sT[2]) + self.pack_store(128, 16, sT[2]) + self.stats_out(128, SO_OFF, 24)
        A.lines(flat(dq[:nq]))
        A.lines(e)
        self.ts("w4_epi")
        self.signal(6, dq[nq:] + [f"v_accvgpr_write_b32 a{aRES+i}, v{128+i}" for i in range(16)])
        self.ts("w4_sig")

    def final_store(self):
        A = self.A
        A("L_final:")
        for d in range(8):
            A(f"v_cvt_pk_bf16_f32 v{16+d}, v{128+2*d}, v{128+2*d+1}")
        for b in (16, 20):
            A(f"v_permlane32_swap_b32 v{b}, v{b+2}")
            A(f"v_permlane32_swap_b32 v{b+1}, v{b+3}")
        d, t = vT[0], vT[1]
        A(f"v_and_b32 {d}, 31, {vL}")
        A(f"v_mul_u32_u24 {d}, 896, {d}")
        A(f"v_lshrrev_b32 {t}, 5, {vL}")
        A(f"v_lshlrev_b32 {t}, 4, {t}")
        A(f"v_add_u32 {d}, {d}, {t}")
        A(f"s_mul_i32 {sT[2]}, {sTB32}, {32*896}")
        A(f"s_lshl_b32 {sT[3]}, {sFT}, 7")
        A(f"s_add_u32 {sT[2]}, {sT[2]}, {sT[3]}")
        A(f"s_lshl_b32 {sT[3]}, {sKH}, 6")
        A(f"s_add_u32 {sT[2]}, {sT[2]}, {sT[3]}")
        A(f"buffer_store_dwordx4 v[16:19], {d}, {sOUT}, {sT[2]} offen")
        A(f"buffer_store_dwordx4 v[20:23], {d}, {sOUT}, {sT[2]} offen offset:32")
        self.ts("final")

    def idle(self):
        A = self.A
        A("L_idle:")
        A.vm, A.lg = [], []
        widx = [f"s_sub_u32 {sT[3]}, {sSLOT}, 28", f"s_lshl_b32 {sT[3]}, {sT[3]}, 2", f"s_add_u32 {sT[3]}, {sT[3]}, {sW}"]
        A(f"s_lshl_b32 {sT[7]}, {sXCD}, 2")
        self.poll_simple(self.opt.get("idleT", 3), sT[7], 7)
        for i, g in enumerate(self.touch(sW4, widx, 784, 16)):
            A.lines([x.replace("v16,", f"v{16+i},") for x in g])
        A(f"s_cmp_lg_u32 {sLAYER}, 0")
        A("s_cbranch_scc1 L_finish")
        A(f"s_lshl_b32 {sT[7]}, {sXCD}, 1")
        self.poll_simple(5, sT[7], 14)
        for i, g in enumerate(self.touch(sWS, widx, 672, 16, base=PK_OFF)):
            A.lines([x.replace("v16,", f"v{16+i},") for x in g])
        A.lines(flat(self.dma_qkvw_packed()))
        A.settle()

    def build(self):
        A = self.A
        self.prologue()
        A("L_layer:")
        self.qkv_phase()
        self.attention()
        A(f"s_cmp_eq_u32 {sACT}, 0")
        A("s_cbranch_scc1 L_idle" if not self.stop else "s_cbranch_scc1 L_idle2")
        self.wo_phase()
        self.w1_phase()
        self.w2_phase()
        self.w3_phase()
        self.w4_phase()
        A("s_branch L_next")
        if self.stop:
            A("L_idle2:")
            A(f"s_cmp_eq_u32 {sLAYER}, {self.stop[1]}")
            A("s_cbranch_scc1 L_finish")
        self.idle()
        A("L_next:")
        self.phase_end("w4")
        self.ts_store()
        A(f"s_mov_b32 {sLAYER}, 1")
        A(f"s_mov_b32 {sLB}, {LB0 + LBSTR}")
        A.vm, A.lg = [], []
        A("s_branch L_layer")
        self.final_store()
        A("L_finish:")
        self.ts_store()
        A("L_exit:")
        A("s_endpgm")
        head = open("cdna_kernels/%s.s.ref" % NAME).read().split("; Override launch")[0]
        return (head + "; Persistent fused kernel: 256 workgroups (one per CU), 4 waves x 512 registers.\n"
                "; @launch grid=(256,1,1) block=(256,1,1) lds=163840\n"
                '.amdgcn_target "amdgcn-amd-amdhsa--gfx950"\n.text\n'
                f".globl {NAME}_kernel\n.p2align 8\n.type {NAME}_kernel,@function\n{NAME}_kernel:\n"
                + A.text() +
                '.section .rodata,"a"\n.p2align 6\n'
                f".amdhsa_kernel {NAME}_kernel\n"
                "  .amdhsa_next_free_vgpr 512\n  .amdhsa_next_free_sgpr 102\n  .amdhsa_accum_offset 256\n"
                "  .amdhsa_group_segment_fixed_size 0\n  .amdhsa_kernarg_size 88\n  .amdhsa_user_sgpr_count 2\n"
                "  .amdhsa_user_sgpr_kernarg_segment_ptr 1\n  .amdhsa_system_sgpr_workgroup_id_x 1\n"
                ".end_amdhsa_kernel\n")


if __name__ == "__main__":
    import argparse, json
    ap = argparse.ArgumentParser()
    ap.add_argument("-o", default="k.s")
    ap.add_argument("--stop", default=None)
    ap.add_argument("--prof", type=int, default=0)
    ap.add_argument("--fb", action="store_true")
    ap.add_argument("--opt", default="")
    a = ap.parse_args()
    stop = None
    if a.stop:
        n, l = a.stop.split(":")
        stop = (n, int(l))
    opt = {kv.split("=")[0]: int(kv.split("=")[1]) for kv in a.opt.split(",") if kv}
    g = Gen(stop, a.prof, a.fb, opt)
    open(a.o, "w").write(g.build())
    json.dump(g.tsnames, open(a.o + ".ts.json", "w"))
    print("nops inserted:", g.A.nnop, "lines:", len(g.A.out))
```

```python
import sys, math, struct
from asmlib import Asm, interleave

NAME = "interleave_layers__softmax_full_mha__mixer_s_mlp__prompt"


def f2u(x):
    return struct.unpack("<I", struct.pack("<f", x))[0]


def fx(x):
    return "0x%08x" % f2u(x)


def flat(G):
    out = []
    for g in G:
        out += g if isinstance(g, list) else [g]
    return out


def flat1(G):
    return [x for g in G for x in g]


TS_OFF = 0x20000
CS_OFF = 0xC0000
LB0, LBSTR = 0x140000, 0x2000000
Q_OFF, KV_OFF, O_OFF = 0x0, 0x200000, 0x600000
XM_OFF, H_OFF, X1_OFF, XO_OFF, G_OFF = 0x800000, 0xA00000, 0xC00000, 0xE00000, 0x1000000
SM_OFF, S1_OFF, SO_OFF, QN_OFF, KN_OFF = 0x1800000, 0x1840000, 0x1880000, 0x18C0000, 0x18C4000
PK_OFF = 0x4140000
WS_SIZE = 0x4300000
OOB = 0x40000000
KBOUND = 230.0
QBOUND = 64.0 * 64.0 / KBOUND * 0.98
LA, LBB, LC, LEND = 0, 57344, 114688, 163840
QKVW = LBB
SECPOS = {1: 0, 0: 28672, 2: 57344}
QSCR = LC + 28672
W3SCR = LEND - 2048
W1SCR = LEND - 1024

sX, sWQ, sWO, sW1, sW2, sW3, sW4, sOUT, sDBG, sWS = [f"s[{4*i}:{4*i+3}]" for i in range(1, 11)]
sW, sXCD, sSLOT, sLAYER, sLB = "s44", "s45", "s46", "s47", "s48"
sQTB, sQH, sAH, sAQB, sTB64, sFT, sT128, sF3 = "s49", "s50", "s51", "s52", "s53", "s54", "s55", "s56"
sACT, sKH, sNI, sTB32, sCSW = "s57", "s58", "s59", "s60", "s61"
sG4 = "s62"
sMB, sN3 = "s71", "s89"
sM3 = "s[0:1]"
sFL = [f"s{64+i}" for i in range(7)]
sT = [f"s{72+i}" for i in range(8)]
sEX = "s[80:81]"
sHI = "s[82:83]"
sPADM = "s[84:85]"
sPM = "s[86:87]"
sONES = "s88"
sC = [f"s{90+i}" for i in range(6)] + ["s3"]
sVOTE = "s[86:87]"
sTSV = "s[96:97]"
vL, vL16, vL4, vTR, vTQ, vDM, vM, vR1 = "v1", "v2", "v3", "v4", "v5", "v6", "v8", "v9"
vTS = "v7"
vL1K, vONE, vS3 = "v0", "a238", "v250"
vT = [f"v{10+i}" for i in range(6)]
aRES = 240
MF = "v_mfma_f32_32x32x16_bf16"


def vr(b, n=4):
    return f"v[{b}:{b+n-1}]"


def ar(b, n=4):
    return f"a[{b}:{b+n-1}]"


def pk(op, d, *srcs, neg=None):
    ops, hi = [], []
    for s in srcs:
        if isinstance(s, tuple):
            assert s[1] % 2 == 0
            ops.append(vr(s[1], 2))
            hi.append(0)
        else:
            assert s % 2 == 0
            ops.append(vr(s, 2))
            hi.append(1)
    t = f"v_pk_{op}_f32 {vr(d,2)}, " + ", ".join(ops)
    if 0 in hi:
        t += " op_sel_hi:[" + ",".join(map(str, hi)) + "]"
    if neg:
        n = "[" + ",".join(map(str, neg)) + "]"
        t += f" neg_lo:{n} neg_hi:{n}"
    return t


class Gen:
    def __init__(self, stop=None, prof=0, force_fallback=False, opt=None):
        self.A = Asm()
        self.stop = stop
        self.prof = prof
        self.force_fallback = force_fallback
        self.uid = 0
        self.nts = 0
        self.tsnames = []
        self.opt = opt or {}

    def lab(self, s):
        self.uid += 1
        return f"L_{s}_{self.uid}"

    def ts(self, name):
        if not self.prof:
            return
        A = self.A
        i = self.nts
        self.nts += 1
        if i >= 64: return
        self.tsnames.append(name)
        A(f"{'s_memtime' if self.prof == 2 else 's_memrealtime'} {sTSV}")
        A("s_waitcnt lgkmcnt(0)")
        A(f"v_writelane_b32 {vTS}, s96, {i}")

    def ts_store(self):
        if not self.prof:
            return
        A = self.A
        A.settle()
        A(f"s_lshl_b32 {sT[0]}, s2, 2")
        A(f"s_add_u32 {sT[0]}, {sT[0]}, {sW}")
        A(f"s_lshl_b32 {sT[0]}, {sT[0]}, 1")
        A(f"s_add_u32 {sT[0]}, {sT[0]}, {sLAYER}")
        A(f"s_lshl_b32 {sT[0]}, {sT[0]}, 8")
        A(f"s_add_u32 {sT[0]}, {sT[0]}, {TS_OFF}")
        A(f"buffer_store_dword {vTS}, {vL4}, {sWS}, {sT[0]} offen")

    def phase_end(self, name):
        if self.stop and self.stop[0] == name:
            A = self.A
            A("s_waitcnt vmcnt(0) lgkmcnt(0)")
            A.settle()
            A(f"s_cmp_eq_u32 {sLAYER}, {self.stop[1]}")
            A("s_cbranch_scc1 L_finish")

    def signal(self, t, after=None):
        A = self.A
        if after:
            A.lines(flat(after))
            A.wait_tag("st")
            A("s_waitcnt lgkmcnt(0)")
        else:
            A("s_waitcnt vmcnt(0) lgkmcnt(0)")
        keep = list(A.vm)
        A("s_barrier")
        l = self.lab("sig")
        A(f"s_cmp_lg_u32 {sW}, 0")
        A(f"s_cbranch_scc1 {l}")
        if t == 3:
            A(f"s_mov_b64 exec, {sM3}")
        elif t in (2, 5):
            n = 7 if t == 2 else 14
            A(f"s_mov_b32 s87, 0")
            A(f"s_mov_b32 s86, {hex((1 << n) - 1)}")
            A(f"s_cmp_eq_u32 {sSLOT}, 0")
            A(f"s_cselect_b32 s86, {hex((1 << n) - 1 | 0xf0000000)}, s86")
            A(f"s_mov_b64 exec, {sPM}")
        else:
            A(f"s_mov_b64 exec, {hex((1 << (16 if t in (0, 6) else 14)) - 1)}")
        A(f"buffer_atomic_add {vONE}, {vS3 if t == 3 else vL1K}, {sWS}, {sFL[t]} offen sc1")
        A("s_mov_b64 exec, -1")
        A.vm = keep
        A(f"{l}:")

    def poll_loop(self, load, want, mask, low16=False):
        A = self.A
        l = self.lab("pl")
        A(f"s_mov_b64 exec, {mask}")
        A(f"s_mov_b32 {sT[1]}, 0")
        A.settle()
        A(f"{l}_loop:")
        A(load)
        A(f"s_add_u32 {sT[1]}, {sT[1]}, 1")
        A(f"s_cmp_gt_u32 {sT[1]}, 0x40000")
        A(f"s_cbranch_scc1 {l}_out")
        A("s_waitcnt vmcnt(0)")
        if low16:
            A(f"v_and_b32 {vT[0]}, 0xffff, {vT[1]}")
        A(f"v_cmp_gt_u32 vcc, {want}, {vT[0] if low16 else vT[1]}")
        A(f"s_cbranch_vccnz {l}_loop")
        A(f"{l}_out:")
        A("s_waitcnt vmcnt(0)")
        if low16:
            A(f"v_mov_b32 {vT[0]}, {LA}")
            A(f"ds_write_b32 {vT[0]}, {vT[1]}")
            A("s_waitcnt lgkmcnt(0)")
        A("s_mov_b64 exec, -1")

    def poll(self, t, n, bias=1):
        A = self.A
        l = self.lab("poll")
        A("s_waitcnt vmcnt(0) lgkmcnt(0)")
        A.settle()
        A(f"s_cmp_lg_u32 {sW}, 0")
        A(f"s_cbranch_scc1 {l}_done")
        A(f"s_add_u32 {sT[0]}, {sLAYER}, {bias}")
        A(f"s_mul_i32 {sT[0]}, {sT[0]}, {n}")
        self.poll_loop(f"buffer_load_dword {vT[1]}, {vL1K}, {sWS}, {sMB} offen offset:{4*t} sc1", sT[0], 1, low16=(t == 0))
        A(f"{l}_done:")
        A("s_barrier")

    def dma_tile64(self, srd, stride, col_lines, lds_base, vdm):
        L = list(col_lines)
        L += [f"s_mul_i32 {sT[4]}, {sW}, {14*8*stride}", f"s_add_u32 {sT[3]}, {sT[3]}, {sT[4]}",
              f"s_mul_i32 {sT[4]}, {sW}, {14*1024}", f"s_add_u32 m0, {sT[4]}, {lds_base}"]
        G = []
        for i in range(14):
            if i:
                L = [f"s_add_u32 {sT[3]}, {sT[3]}, {8*stride}", "s_add_u32 m0, m0, 1024"]
            G.append(L + [f"buffer_load_dwordx4 {vdm}, {srd}, {sT[3]} offen lds @dma"])
        return G

    def dm_lane(self, dst, stride):
        t = vT[5]
        return [f"v_lshrrev_b32 {dst}, 5, {vL}", f"v_lshlrev_b32 {dst}, 2, {dst}",
                f"v_bfe_u32 {t}, {vL}, 2, 2", f"v_add_u32 {dst}, {dst}, {t}",
                f"v_mul_u32_u24 {dst}, {stride}, {dst}",
                f"v_bfe_u32 {t}, {vL}, 4, 1", f"v_lshlrev_b32 {t}, 6, {t}", f"v_add_u32 {dst}, {dst}, {t}",
                f"v_and_b32 {t}, 3, {vL}", f"v_lshlrev_b32 {t}, 4, {t}", f"v_add_u32 {dst}, {dst}, {t}"]

    def dma_qkvw_raw(self):
        t, d = vT[5], "v252"
        L = [f"v_lshrrev_b32 {d}, 2, {vL}", f"v_mul_u32_u24 {d}, 2688, {d}",
             f"v_and_b32 {t}, 3, {vL}", f"v_lshlrev_b32 {t}, 4, {t}", f"v_add_u32 {d}, {d}, {t}",
             f"s_mul_i32 s100, {sQH}, 56", f"s_lshr_b32 {sT[4]}, {sW}, 1", f"s_and_b32 {sT[5]}, {sW}, 1",
             f"s_mul_i32 s98, {sT[4]}, 43008", f"s_mul_i32 s99, {sT[5]}, 896", "s_add_u32 s98, s98, s99",
             "s_add_u32 s98, s98, s100", "s_add_u32 s98, s98, 896",
             f"s_lshl_b32 s99, {sT[4]}, 10", f"s_mul_i32 {sT[5]}, {sT[5]}, 57344", f"s_add_u32 s99, s99, {sT[5]}",
             f"s_add_u32 s99, s99, {QKVW}",
             f"s_mul_i32 {sT[4]}, {sW}, 43008", f"s_add_u32 s100, s100, {sT[4]}",
             f"s_lshl_b32 s101, {sW}, 10", f"s_add_u32 s101, s101, {QKVW + 28672}"]
        KV, Q = [], []
        for i in range(14):
            KV.append(L + ["s_mov_b32 m0, s99", "s_add_u32 s99, s99, 2048",
                           f"buffer_load_dwordx4 {d}, {sWQ}, s98 offen lds @wkv", "s_add_u32 s98, s98, 86016"])
            L = []
        for i in range(7):
            Q.append(["s_mov_b32 m0, s101", "s_add_u32 s101, s101, 4096",
                      f"buffer_load_dwordx4 {d}, {sWQ}, s100 offen lds @wq", "s_add_u32 s100, s100, 172032"])
        return KV, Q

    def dma_qkvw_packed(self):
        L = [f"s_mul_i32 {sT[3]}, {sQH}, 86016", f"s_mul_i32 {sT[4]}, {sW}, 21504", f"s_add_u32 {sT[3]}, {sT[3]}, {sT[4]}",
             f"s_add_u32 {sT[3]}, {sT[3]}, {PK_OFF}", f"s_add_u32 m0, {sT[4]}, {QKVW}"]
        G = []
        for i in range(21):
            if i and i % 4 == 0:
                L = [f"s_add_u32 {sT[3]}, {sT[3]}, 4096", "s_add_u32 m0, m0, 4096"]
            G.append(L + [f"buffer_load_dwordx4 {vL16}, {sWS}, {sT[3]} offen offset:{(i%4)*1024} sc1 lds @wq"])
            L = []
        G.append(self.cs_restore(0, QSCR, 24))
        return G

    def cs_restore(self, off, lds, nlanes):
        return [f"s_add_u32 {sT[4]}, {sCSW}, {off}", f"s_mov_b32 m0, {lds}", f"s_mov_b64 exec, {hex((1 << nlanes) - 1)}",
                f"buffer_load_dwordx4 {vL16}, {sWS}, {sT[4]} offen sc1 lds @cs", "s_mov_b64 exec, -1"]

    def cs_save(self, acc, tile_sgpr, lds, off):
        L = [f"s_lshl_b32 {sT[0]}, {tile_sgpr}, 7",
             f"v_lshrrev_b32 {vT[0]}, 5, {vL}", f"v_lshlrev_b32 {vT[0]}, 4, {vT[0]}",
             f"v_add_u32 {vT[0]}, {sT[0]}, {vT[0]}", f"v_add_u32 {vT[1]}, {lds}, {vT[0]}",
             f"s_add_u32 {sT[0]}, {sCSW}, {off}",
             "s_mov_b32 s80, 1", "s_mov_b32 s81, 1", f"s_mov_b64 exec, {sEX}"]
        for i in range(4):
            L.append(f"ds_write_b128 {vT[1]}, {vr(acc+4*i)} offset:{32*i}")
        for i in range(4):
            L.append(f"buffer_store_dwordx4 {vr(acc+4*i)}, {vT[0]}, {sWS}, {sT[0]} offen offset:{32*i} sc1")
        L.append("s_mov_b64 exec, -1")
        return L

    def frag_loads(self, regs, base_lines, n, vaddr=vL16, s=None):
        s = s or sT[2]
        G = []
        L = list(base_lines)
        for i in range(n):
            if i and i % 4 == 0:
                L.append(f"s_add_u32 {s}, {s}, 4096")
            va = vaddr(i) if callable(vaddr) else vaddr
            L.append(f"buffer_load_dwordx4 {regs(i)}, {va}, {sWS}, {s} offen offset:{(i%4)*1024} sc1")
            G.append(L)
            L = []
        return G

    def stats_loads(self, off, tb, dst):
        G = []
        L = [f"s_mul_i32 {sT[5]}, {tb}, 3584", f"s_add_u32 {sT[5]}, {sT[5]}, {off}",
             f"v_lshrrev_b32 v{dst+14}, 5, {vL}", f"v_mul_u32_u24 v{dst+14}, {1792-256}, v{dst+14}",
             f"v_lshl_add_u32 v{dst+14}, {vL}, 3, v{dst+14}"]
        for i in range(7):
            G.append(L + [f"buffer_load_dwordx2 {vr(dst+2*i,2)}, v{dst+14}, {sWS}, {sT[5]} offen offset:{i*256} sc1"])
            L = []
        return G

    def stats_sum(self, src, s1, s2):
        L = []
        for a, b in ((0, 1), (2, 3), (4, 5), (0, 2), (4, 6), (0, 4)):
            for c in range(2):
                L.append(f"v_add_f32 v{src+2*a+c}, v{src+2*a+c}, v{src+2*b+c}")
        L += [f"v_mov_b32 {s1}, v{src}", f"v_mov_b32 {s2}, v{src+1}",
              f"v_permlane32_swap_b32 {s1}, v{src}", f"v_permlane32_swap_b32 {s2}, v{src+1}",
              f"v_add_f32 {s1}, {s1}, v{src}", f"v_add_f32 {s2}, {s2}, v{src+1}"]
        return L

    def stats_fin(self, s1, s2, m, var):
        return [f"v_mul_f32 {m}, {sC[0]}, {s1}", f"v_mul_f32 {var}, {sC[0]}, {s2}",
                f"v_fma_f32 {var}, -{m}, {m}, {var}", f"v_max_f32 {var}, 0, {var}"]

    def stats_out(self, val, off, tmp):
        a, b = tmp, tmp + 2
        L = [pk("add", a, val, val + 2), pk("mul", b, val, val)]
        for i in range(2, 16, 2):
            L.append(pk("fma", b, val + i, val + i, b))
            if i >= 4:
                L.append(pk("add", a, a, val + i))
        L += [f"v_add_f32 v{a}, v{a}, v{a+1}", f"v_add_f32 v{a+1}, v{b}, v{b+1}",
              f"s_mul_i32 {sT[5]}, {sTB32}, 3584", f"v_mov_b32 v{b}, v{a}", f"v_mov_b32 v{b+1}, v{a+1}",
              f"s_lshl_b32 {sT[6]}, {sFT}, 9", f"s_add_u32 {sT[5]}, {sT[5]}, {sT[6]}",
              f"v_permlane32_swap_b32 v{a}, v{b}", f"v_permlane32_swap_b32 v{a+1}, v{b+1}",
              f"s_lshl_b32 {sT[6]}, {sKH}, 8", f"s_add_u32 {sT[5]}, {sT[5]}, {sT[6]}",
              pk("add", a, a, b), f"v_lshlrev_b32 v{b}, 3, {vL}",
              f"s_add_u32 {sT[5]}, {sT[5]}, {sLB}", f"s_add_u32 {sT[5]}, {sT[5]}, {off}",
              "s_mov_b64 exec, 0xffffffff", f"buffer_store_dwordx2 {vr(a,2)}, v{b}, {sWS}, {sT[5]} offen sc1 @st",
              "s_mov_b64 exec, -1"]
        return L

    def pack_store(self, val, tmp, soff, off0=0, fix=None):
        L = []
        for d in range(8):
            L.append(f"v_cvt_pk_bf16_f32 v{tmp+d}, v{val+2*d}, v{val+2*d+1}")
            if fix:
                L += fix(d, tmp + d)
            if d == 3:
                L.append(f"buffer_store_dwordx4 {vr(tmp)}, {vL16}, {sWS}, {soff} offen offset:{off0} sc1 @st")
        L.append(f"buffer_store_dwordx4 {vr(tmp+4)}, {vL16}, {sWS}, {soff} offen offset:{off0+1024} sc1 @st")
        return L

    def tile_off(self, off, s):
        return [f"s_mul_i32 {s}, {sTB32}, 28672", f"s_lshl_b32 {sT[6]}, {sFT}, 12", f"s_add_u32 {s}, {s}, {sT[6]}",
                f"s_lshl_b32 {sT[6]}, {sKH}, 11", f"s_add_u32 {s}, {s}, {sT[6]}",
                f"s_add_u32 {s}, {s}, {sLB}", f"s_add_u32 {s}, {s}, {off}"]

    def tr(self, dst, vaddr, off, second, vaddr2=None):
        kind, b = dst
        r = vr if kind == "v" else ar
        return [f"ds_read_b64_tr_b16 {r(b,2)}, {vaddr} offset:{off}",
                f"ds_read_b64_tr_b16 {r(b+2,2)}, {vaddr2 or vaddr} offset:{off+second}"]

    def colsum(self, vaddr, off_of, second, acc, stage, ones):
        L = [f"v_mov_b32 v{ones+i}, {sONES}" for i in range(4)]
        D = 5
        for ks in range(D):
            L += self.tr(("v", stage + 4 * (ks % 6)), vaddr, off_of(ks), second)
        for ks in range(28):
            L.append(f"{MF} {vr(acc,16)}, {vr(stage+4*(ks%6))}, {vr(ones)}, {vr(acc,16) if ks else '0'}")
            if ks + D < 28:
                L += self.tr(("v", stage + 4 * ((ks + D) % 6)), vaddr, off_of(ks + D), second)
        return L

    def gelu_pre(self, acc, cs, w, m, ka, kb):
        L = []
        for g in range(0, 16, 8):
            r = range(g, g + 8, 2)
            L += [pk("fma", acc + i, ("b", m), cs + i, acc + i, neg=[1, 0, 0]) for i in r]
            L += [pk("mul", w + i, acc + i, acc + i) for i in r]
            L += [pk("fma", w + i, w + i, ("b", kb), ("b", ka)) for i in r]
            L += [pk("mul", w + i, w + i, acc + i) for i in r]
        return L

    def gelu_post(self, acc, w, iR, packed):
        L = []
        for g in range(0, 16, 4):
            r = range(g, g + 4)
            L += [f"v_exp_f32 v{w+i}, v{w+i}" for i in r]
            if packed:
                L += [pk("fma", w + i, w + i, ("b", iR), ("b", iR)) for i in (g, g + 2)]
            else:
                L += [f"v_fma_f32 v{w+i}, v{w+i}, v{iR}, v{iR}" for i in r]
            L += [f"v_rcp_f32 v{w+i}, v{w+i}" for i in r]
            if packed:
                L += [pk("mul", acc + i, acc + i, w + i) for i in (g, g + 2)]
            else:
                L += [f"v_mul_f32 v{acc+i}, v{acc+i}, v{w+i}" for i in r]
        return L

    def gelu_consts(self, R, ka, kb, iR):
        return [f"v_mul_f32 v{ka}, {sC[2]}, {R}", f"v_mul_f32 v{kb}, {R}, {R}", f"v_mul_f32 v{kb}, v{kb}, {R}",
                f"v_mul_f32 v{kb}, {sC[3]}, v{kb}", f"v_rcp_f32 v{iR}, {R}"]

    def touch(self, srd, idx_sgpr_lines, lines_per_wave, dst, base=0):
        n = (lines_per_wave + 63) // 64
        L = list(idx_sgpr_lines) + [f"s_mul_i32 {sT[3]}, {sT[3]}, {lines_per_wave*128}"]
        if base:
            L.append(f"s_add_u32 {sT[3]}, {sT[3]}, {base}")
        L.append(f"v_lshlrev_b32 {vT[5]}, 7, {vL}")
        G = []
        for i in range(n):
            if i:
                L = [f"s_add_u32 {sT[3]}, {sT[3]}, 8192"]
            G.append(L + [f"buffer_load_dword v{dst}, {vT[5]}, {srd}, {sT[3]} offen"])
        return G

    def warm(self, srd, idx_sgpr_lines, n, per_wave_bytes, dst, base=0):
        L = list(idx_sgpr_lines) + [f"s_mul_i32 {sT[3]}, {sT[3]}, {per_wave_bytes}"]
        if base:
            L.append(f"s_add_u32 {sT[3]}, {sT[3]}, {base}")
        G = []
        for i in range(n):
            if i and i % 4 == 0:
                L = [f"s_add_u32 {sT[3]}, {sT[3]}, 4096"]
            G.append(L + [f"buffer_load_dwordx4 {vr(dst)}, {vL16}, {srd}, {sT[3]} offen offset:{(i%4)*1024} @nodst"])
            L = []
        return G

    def prologue(self):
        A = self.A
        A("s_cmp_ge_u32 s2, 256")
        A("s_cbranch_scc1 L_exit")
        A("s_load_dwordx16 s[48:63], s[0:1], 0")
        A("s_load_dwordx4 s[64:67], s[0:1], 64")
        A("s_load_dwordx2 s[68:69], s[0:1], 80")
        A(f"v_and_b32 {vL}, 63, v0")
        A(f"v_lshrrev_b32 {vT[0]}, 6, v0")
        A(f"v_lshlrev_b32 {vL16}, 4, {vL}")
        A(f"v_readfirstlane_b32 {sW}, {vT[0]}")
        A(f"v_lshlrev_b32 {vL4}, 2, {vL}")
        A(f"v_mov_b32 {vTS}, 0")
        t = vT[0]
        A(f"v_bfe_u32 {vTQ}, {vL}, 2, 2")
        A(f"v_lshlrev_b32 {vTQ}, 6, {vTQ}")
        A(f"v_bfe_u32 {t}, {vL}, 4, 1")
        A(f"v_lshlrev_b32 {t}, 5, {t}")
        A(f"v_add_u32 {vTQ}, {vTQ}, {t}")
        A(f"v_and_b32 {t}, 3, {vL}")
        A(f"v_lshlrev_b32 {t}, 3, {t}")
        A(f"v_add_u32 {vTQ}, {vTQ}, {t}")
        A(f"v_lshrrev_b32 {t}, 5, {vL}")
        A(f"v_lshlrev_b32 {t}, 9, {t}")
        A(f"v_add_u32 {vTR}, {vTQ}, {t}")
        A.lines(self.dm_lane(vDM, 896))
        A(f"s_and_b32 {sXCD}, s2, 7")
        A(f"s_lshr_b32 {sSLOT}, s2, 3")
        A(f"s_mov_b32 {sLAYER}, 0")
        A("s_mov_b32 s82, 0")
        A("s_mov_b32 s83, -1")
        A("s_mov_b32 s84, 0xf0000000")
        A("s_mov_b32 s85, 0xf0000000")
        A(f"s_mov_b32 {sONES}, 0x3f803f80")
        k0 = -2.0 * math.log2(math.e) * math.sqrt(2.0 / math.pi)
        for i, c in enumerate([1.0 / 448, 1e-5, k0, k0 * 0.044715, 28 ** -0.5 * math.log2(math.e), KBOUND, QBOUND]):
            A(f"s_mov_b32 {sC[i]}, {fx(c)}")
        A("s_waitcnt lgkmcnt(0)")
        srcs = [(48, 2048 * 896), (50, 448 * 2688), (52, 448 * 896), (56, 448 * 896), (58, 448 * 896),
                (60, 448 * 3584), (62, 1792 * 896), (64, 2048 * 896), (66, 256), (68, WS_SIZE)]
        for i, (p, n) in enumerate(srcs):
            b = 4 + 4 * i
            A(f"s_mov_b32 s{b}, s{p}")
            A(f"s_mov_b32 s{b+1}, s{p+1}")
            A(f"s_mov_b32 s{b+2}, {n}")
            A(f"s_mov_b32 s{b+3}, 0x20000")
        A(f"s_mov_b32 {sLB}, {LB0}")
        self.ts("start")
        A(f"s_lshr_b32 {sT[0]}, {sSLOT}, 4")
        A(f"s_lshl_b32 {sT[1]}, {sXCD}, 1")
        A(f"s_add_u32 {sAH}, {sT[0]}, {sT[1]}")
        A(f"s_and_b32 {sQH}, {sSLOT}, 15")
        A(f"s_mov_b32 {sAQB}, {sQH}")
        A(f"s_lshl_b32 {sQTB}, {sAH}, 2")
        A(f"s_add_u32 {sQTB}, {sQTB}, {sW}")

    def prologue2(self):
        A = self.A
        A(f"s_cmp_lt_u32 {sSLOT}, 28")
        A(f"s_cselect_b32 {sACT}, 1, 0")
        A(f"s_mul_i32 {sT[0]}, {sSLOT}, 37")
        A(f"s_lshr_b32 {sT[0]}, {sT[0]}, 8")
        A(f"s_mul_i32 {sT[1]}, {sT[0]}, 7")
        A(f"s_sub_u32 {sFT}, {sSLOT}, {sT[1]}")
        A(f"s_lshl_b32 {sT[1]}, {sXCD}, 2")
        A(f"s_add_u32 {sTB64}, {sT[0]}, {sT[1]}")
        A(f"s_lshr_b32 {sT[0]}, {sT[0]}, 1")
        A(f"s_mul_i32 {sT[1]}, {sT[0]}, 14")
        A(f"s_sub_u32 {sF3}, {sSLOT}, {sT[1]}")
        A(f"s_lshl_b32 {sT[1]}, {sXCD}, 1")
        A(f"s_add_u32 {sT128}, {sT[0]}, {sT[1]}")
        A(f"s_lshr_b32 {sKH}, {sW}, 1")
        A(f"s_and_b32 {sNI}, {sW}, 1")
        A(f"s_lshl_b32 {sTB32}, {sTB64}, 1")
        A(f"s_add_u32 {sTB32}, {sTB32}, {sNI}")
        A(f"s_lshl_b32 {sCSW}, s2, 11")
        A(f"s_add_u32 {sCSW}, {sCSW}, {CS_OFF}")
        A(f"s_lshl_b32 {sMB}, s2, 7")
        def fl(t, x, n):
            A(f"s_and_b32 {sT[0]}, {x}, 1")
            A(f"s_mul_i32 {sT[0]}, {sT[0]}, {n*1024}")
            A(f"s_lshr_b32 {sT[1]}, {x}, 1")
            A(f"s_lshl_b32 {sT[1]}, {sT[1]}, 7")
            A(f"s_add_u32 {sT[0]}, {sT[0]}, {sT[1]}")
            A(f"s_add_u32 {sFL[t]}, {sT[0]}, {4*t}")
        fl(0, sQH, 16)
        fl(1, sAQB, 14)
        fl(4, sT128, 14)
        fl(5, sT128, 14)
        fl(6, sT128, 16)
        A(f"s_sub_u32 {sT[0]}, {sSLOT}, {sFT}")
        A(f"s_lshl_b32 {sT[0]}, {sT[0]}, 10")
        A(f"s_lshl_b32 {sT[1]}, {sXCD}, 7")
        A(f"s_add_u32 {sT[0]}, {sT[0]}, {sT[1]}")
        A(f"s_add_u32 {sFL[2]}, {sT[0]}, 8")
        A(f"s_mov_b32 {sFL[3]}, 12")
        A("s_mov_b32 s0, 0x7f7f7f")
        A("s_mov_b32 s1, 0")
        A(f"s_mov_b32 {sN3}, 21")
        A(f"s_cmp_eq_u32 {sTB64}, 0")
        A("s_cselect_b32 s0, 0x7f7f00, s0")
        A(f"s_cselect_b32 {sN3}, 14, {sN3}")
        A(f"s_cmp_eq_u32 {sTB64}, 31")
        A("s_cselect_b32 s0, 0x7f7f, s0")
        A(f"s_cselect_b32 {sN3}, 14, {sN3}")
        A(f"v_lshlrev_b32 {vL1K}, 10, {vL}")
        A(f"v_accvgpr_write_b32 {vONE}, 1")

    def flag_init(self, step):
        A = self.A
        keep = list(A.vm)
        l = self.lab("init")
        A(f"s_cmp_lg_u32 {sW}, 3")
        A(f"s_cbranch_scc1 {l}")
        if step == 0:
            A(f"v_mov_b32 {vT[0]}, 0")
            A(f"s_lshl_b32 {sT[0]}, s2, 7")
            A("s_mov_b64 exec, 0xffffffff")
            A(f"buffer_store_dword {vT[0]}, {vL4}, {sWS}, {sT[0]} offen sc1")
        else:
            A(f"s_and_b32 {sT[0]}, s2, 63")
            A(f"s_lshl_b32 {sT[0]}, {sT[0]}, 2")
            A("s_mov_b64 exec, 1")
            A(f"buffer_atomic_add {vONE}, {vL4}, {sDBG}, {sT[0]} offen sc1")
        A("s_mov_b64 exec, -1")
        A.settle()
        A.vm = keep
        A(f"{l}:")

    def qkv_addr(self, layer0):
        A = self.A
        a1, a2, b1, b2 = vT[0], vT[1], vT[2], vT[3]
        A(f"v_lshrrev_b32 {a1}, 5, {vL}")
        A(f"v_lshlrev_b32 {a1}, {9 if layer0 else 8}, {a1}")
        A(f"s_mov_b32 {sT[0]}, {QKVW}")
        A(f"v_add3_u32 {a1}, {a1}, {vTQ}, {sT[0]}")
        A(f"v_add_u32 {a2}, {256 if layer0 else 512}, {a1}")
        A(f"v_add_u32 {b1}, 57344, {a1}")
        A(f"v_add_u32 {b2}, 57344, {a2}")

    def q_rd(self, i):
        a1, a2, b1, b2 = vT[0], vT[1], vT[2], vT[3]
        st = ("v", 176 + 4 * (i % 6))
        if i < 56:
            ks, p = divmod(i, 2)
            return self.tr(st, b1, ks * 1024, 0, b2) if p else self.tr(st, a1, ks * 1024, 0, a2)
        return self.tr(st, a1, 28672 + (i - 56) * 1024, 0, a2)

    def q_mm(self, i):
        w = vr(176 + 4 * (i % 6))
        if i < 56:
            ks, p = divmod(i, 2)
            x = vr(16 + 4 * ks)
            acc = vr(160 if p else 128, 16)
            a, b = (x, w) if p else (w, x)
        else:
            ks = i - 56
            a, b, acc = w, vr(16 + 4 * ks), vr(144, 16)
        return f"{MF} {acc}, {a}, {b}, {acc if ks else '0'}"

    QD = 5

    def qkv_p1(self, loads=None):
        A = self.A
        for i in range(self.QD):
            A.lines(self.q_rd(i))
        loads = list(loads or [])
        for i in range(56):
            A(self.q_mm(i))
            if loads:
                A.lines(loads.pop(0))
            A.lines(self.q_rd(i + self.QD))

    def dots(self, k0, k1):
        L = []
        for r in range(16 + 4 * k0, 16 + 4 * k1):
            L.append(f"v_dot2_f32_bf16 v{200 + 2*(r&1)}, v{r}, {sONES}, v{200 + 2*(r&1)}")
            L.append(f"v_dot2_f32_bf16 v{201 + 2*(r&1)}, v{r}, v{r}, v{201 + 2*(r&1)}")
        return L

    def xnorm(self):
        L = [pk("add", 200, 200, 202)]
        for r in (200, 201):
            L += [f"v_mov_b32 v202, v{r}", f"v_permlane32_swap_b32 v202, v{r}", f"v_add_f32 v{r}, v{r}, v202"]
        L += self.stats_fin("v200", "v201", "v202", "v203")
        L += [f"v_add_f32 v203, {sC[1]}, v203", "v_rsq_f32 v204, v203", "v_mul_f32 v202, v202, v204",
              "v_mov_b32 v200, 0", f"v_mov_b32 v201, {fx(448 * (1 - 1e-5))}"]
        for g in range(16, 128, 4):
            for j in range(4):
                L += [f"v_lshlrev_b32 v{208+2*j}, 16, v{g+j}", f"v_and_b32 v{209+2*j}, 0xffff0000, v{g+j}"]
            L += [pk("fma", 208 + 2 * j, 208 + 2 * j, ("b", 204), ("b", 202), neg=[0, 0, 1]) for j in range(4)]
            L += [f"v_cvt_pk_bf16_f32 v{g+j}, v{208+2*j}, v{209+2*j}" for j in range(4)]
        return L

    def xbase(self, dst):
        return [f"s_mul_i32 {dst}, {sW}, 28672", f"s_cmp_eq_u32 {sW}, 2", f"s_cselect_b32 {dst}, {QKVW + 28672}, {dst}",
                f"s_cmp_eq_u32 {sW}, 3", f"s_cselect_b32 {dst}, {LEND - 28672}, {dst}"]

    def xdma(self):
        d, t = "v253", vT[5]
        L = [f"v_lshrrev_b32 {d}, 2, {vL}", f"v_mul_u32_u24 {d}, 896, {d}",
             f"v_lshrrev_b32 {t}, 4, {vL}", f"v_xor_b32 {t}, {t}, {vL}", f"v_and_b32 {t}, 3, {t}",
             f"v_lshlrev_b32 {t}, 4, {t}", f"v_add_u32 {d}, {d}, {t}"]
        L += [f"s_mul_i32 {sT[2]}, {sQTB}, {32*896}"] + self.xbase(sT[6]) + [f"s_mov_b32 m0, {sT[6]}"]
        for q in range(28):
            seg, rh = q >> 1, q & 1
            L += [f"s_add_u32 {sT[3]}, {sT[2]}, {rh*16*896 + seg*64}"]
            if q:
                L += ["s_add_u32 m0, m0, 1024"]
            L += [f"buffer_load_dwordx4 {d}, {sX}, {sT[3]} offen lds @x{q // 14}"]
        return L

    def xreads(self, rnd):
        e, o, t = "v254", "v255", vT[5]
        L = []
        if rnd == 0:
            L += [f"v_and_b32 {e}, 31, {vL}", f"v_lshlrev_b32 {e}, 6, {e}", f"v_add_u32 {e}, {sT[6]}, {e}",
                  f"v_bfe_u32 {t}, {vL}, 2, 2", f"v_lshrrev_b32 {o}, 5, {vL}", f"v_xor_b32 {t}, {t}, {o}",
                  f"v_xor_b32 {o}, 2, {t}", f"v_lshlrev_b32 {o}, 4, {o}", f"v_add_u32 {o}, {o}, {e}",
                  f"v_lshlrev_b32 {t}, 4, {t}", f"v_add_u32 {e}, {e}, {t}"]
        for ks in range(14 * rnd, 14 * rnd + 14):
            L.append(f"ds_read_b128 {vr(16+4*ks)}, {e if ks % 2 == 0 else o} offset:{(ks >> 1)*2048}")
        return L

    def code_prefetch(self):
        A = self.A
        A("s_getpc_b64 s[96:97]")
        A("L_pc:")
        A(f"s_lshl_b32 {sT[0]}, {sSLOT}, 2")
        A(f"s_add_u32 {sT[0]}, {sT[0]}, {sW}")
        A(f"s_lshl_b32 {sT[0]}, {sT[0]}, 9")
        A(f"v_lshlrev_b32 v250, 3, {vL}")
        A(f"v_add_u32 v250, {sT[0]}, v250")
        A(f"s_mov_b32 {sT[0]}, L_exit-L_pc-8")
        A(f"v_min_u32 v250, {sT[0]}, v250")
        A("global_load_dwordx2 v[248:249], v250, s[96:97] @nodst")

    def resid_load(self):
        A = self.A
        d, t = vT[0], vT[1]
        A(f"v_and_b32 {d}, 31, {vL}")
        A(f"v_mul_u32_u24 {d}, 896, {d}")
        A(f"v_lshrrev_b32 {t}, 5, {vL}")
        A(f"v_lshlrev_b32 {t}, 3, {t}")
        A(f"v_add_u32 {d}, {d}, {t}")
        A(f"s_mul_i32 {sT[2]}, {sTB32}, {32*896}")
        A(f"s_lshl_b32 {sT[3]}, {sFT}, 7")
        A(f"s_add_u32 {sT[2]}, {sT[2]}, {sT[3]}")
        A(f"s_lshl_b32 {sT[3]}, {sKH}, 6")
        A(f"s_add_u32 {sT[2]}, {sT[2]}, {sT[3]}")
        for i in range(4):
            A(f"buffer_load_dwordx2 {vr(240+2*i,2)}, {d}, {sX}, {sT[2]} offen offset:{16*i}")

    def resid_unpack(self):
        A = self.A
        for i in range(8):
            A(f"v_lshlrev_b32 {vT[0]}, 16, v{240+i}")
            A(f"v_and_b32 {vT[1]}, 0xffff0000, v{240+i}")
            A(f"v_accvgpr_write_b32 a{aRES+2*i}, {vT[0]}")
            A(f"v_accvgpr_write_b32 a{aRES+2*i+1}, {vT[1]}")

    def norm_vote(self, val, thr, n, packed):
        if packed:
            L = [pk("mul", n, val, val), pk("mul", n + 2, val + 12, val + 12)]
            L += [pk("fma", n, val + i, val + i, n) for i in range(2, 12, 2)]
            L += [pk("fma", n + 2, val + 14, val + 14, n + 2), f"v_add_f32 v{n}, v{n}, v{n+1}",
                  f"v_add_f32 v{n+2}, v{n+2}, v{n+3}"]
        else:
            L = [f"v_mul_f32 v{n}, v{val}, v{val}", f"v_mul_f32 v{n+1}, v{val+1}, v{val+1}",
                 f"v_mul_f32 v{n+2}, v{val+12}, v{val+12}"]
            L += [f"v_fmac_f32 v{n + i % 2}, v{val+i}, v{val+i}" for i in range(2, 12)]
            L += [f"v_fmac_f32 v{n+2}, v{val+i}, v{val+i}" for i in range(13, 16)]
            L += [f"v_add_f32 v{n}, v{n}, v{n+1}"]
        L += [f"v_cndmask_b32 v{n+2}, v{n+2}, 0, {sHI}", f"v_add_f32 v{n}, v{n}, v{n+2}",
              f"v_mov_b32 v{n+1}, v{n}", f"v_permlane32_swap_b32 v{n}, v{n+1}", f"v_add_f32 v{n}, v{n}, v{n+1}",
              [f"v_cmp_nge_f32 vcc, {thr}, v{n}", f"s_or_b64 {sVOTE}, {sVOTE}, vcc"]]
        return L

    def qkv_p2(self):
        A = self.A
        m, var, R, nrm, RQ, nrq, csv, padv = "v202", "v203", "v204", "v205", "v206", "v202", "v203", "v207"
        sK, sQ = sT[7], sT[1]
        vh, vt = vT[4], vT[5]
        E = [f"s_mov_b64 {sVOTE}, 0"] + self.stats_fin("v200", "v201", m, var)
        E += [f"v_add_f32 {var}, {sC[1]}, {var}", f"v_rsq_f32 {R}, {var}",
              f"s_lshl_b32 {sT[0]}, {sW}, 8", f"s_add_u32 {sT[0]}, {sT[0]}, {QSCR + 512}",
              f"v_add_u32 {vt}, {sT[0]}, {vL4}", f"v_mul_f32 {nrm}, {R}, {m}",
              f"v_mul_f32 {RQ}, {sC[4]}, {R}", f"v_cndmask_b32 v200, {R}, {nrm}, {sHI}",
              f"ds_write_b32 {vt}, v200", f"v_mul_f32 {nrq}, {RQ}, {m}",
              f"v_lshrrev_b32 {vh}, 5, {vL}", f"v_lshlrev_b32 {vh}, 4, {vh}", f"v_add_u32 {vt}, {sT[0]}, {vh}",
              f"v_add_u32 {vh}, {QSCR}, {vh}"]
        E += [f"ds_read_b128 {vr(208+4*i)}, {vh} offset:{32*i}" for i in range(4)]
        E += [f"ds_read_b128 {vr(224+16*p+4*i)}, {vt} offset:{128*p+32*i}" for p in range(2) for i in range(4)]
        E += [f"v_and_b32 v200, 31, {vL}", "v_cmp_eq_u32 vcc, 28, v200", "v_lshlrev_b32 v200, 2, v200",
              f"v_add_u32 v200, {QSCR + 256}, v200", f"ds_read_b32 {csv}, v200",
              f"v_mov_b32 {padv}, {sONES}", f"v_cndmask_b32 {padv}, 0, {padv}, vcc",
              f"s_lshl_b32 {sQ}, {sQH}, 6", f"s_add_u32 {sQ}, {sQ}, {sQTB}", f"s_lshl_b32 {sK}, {sQ}, 12",
              f"s_add_u32 {sK}, {sK}, {sLB}", f"s_add_u32 {sK}, {sK}, {KV_OFF}",
              f"s_lshl_b32 {sQ}, {sQ}, 11", f"s_add_u32 {sQ}, {sQ}, {sLB}", f"v_mov_b32 v200, {sONES}",
              "v_mov_b32 v201, 0x3f80"]
        for i in range(16):
            E += [f"v_mul_f32 v{208+i}, v{208+i}, {nrm}", f"v_fma_f32 v{128+i}, v{128+i}, {R}, -v{208+i}"]
        E += self.norm_vote(128, sC[5], 208, False)
        E += [f"ds_read_b128 {vr(208+4*i)}, {vh} offset:{128+32*i}" for i in range(4)]
        def fixk(d, r):
            return [f"v_cndmask_b32 v{r}, v{r}, v{200 + d - 6}, {sHI}"] if d >= 6 else []
        E += self.pack_store(128, 128, sK, 0, fixk)
        for i in range(16):
            E += [f"v_mul_f32 v{240+i}, v{240+i}, {csv}", f"v_fma_f32 v{160+i}, v{160+i}, v{224+i}, -v{240+i}"]
        E += self.pack_store(160, 160, sK, 2048, lambda d, r: [f"v_cndmask_b32 v{r}, v{r}, {padv}, {sPADM}"])
        main = [[self.q_mm(i)] + (self.q_rd(i + self.QD) if i + self.QD < 84 else []) for i in range(56, 84)]
        A.lines(flat(interleave(main, E, start=0, end=27)))
        self.ts("qkv_p2")
        for i in range(0, 16, 2):
            A(pk("mul", 208 + i, 208 + i, ("b", 202)))
        for i in range(0, 16, 2):
            A(pk("fma", 144 + i, 144 + i, ("b", 206), 208 + i, neg=[0, 0, 1]))
        A.lines(self.pack_store(144, 224, sQ, 0, lambda d, r: [f"v_cndmask_b32 v{r}, v{r}, 0, {sHI}"] if d >= 6 else []))
        A.lines(flat(self.norm_vote(144, sC[6], 208, True)))
        l = self.lab("vote")
        keep = list(A.vm)
        if not self.force_fallback:
            A(f"s_cmp_eq_u64 {sVOTE}, 0")
            A(f"s_cbranch_scc1 {l}")
        A("v_mov_b32 v208, 0x10000")
        A("s_mov_b64 exec, 0xffff")
        A(f"buffer_atomic_add v208, {vL1K}, {sWS}, {sFL[0]} offen sc1")
        A("s_mov_b64 exec, -1")
        A.vm = keep
        A(f"{l}:")

    def qkv_dump(self):
        A = self.A
        l = self.lab("dump")
        A(f"s_lshl_b32 {sT[2]}, {sAH}, 2")
        A(f"s_add_u32 {sT[2]}, {sT[2]}, {sW}")
        A(f"s_cmp_ge_u32 {sT[2]}, 42")
        A(f"s_cbranch_scc1 {l}")
        keep = list(A.vm)
        A(f"s_lshl_b32 {sT[2]}, {sT[2]}, 11")
        A(f"s_add_u32 {sT[3]}, {sT[2]}, {QKVW}")
        A(f"v_add_u32 v208, {sT[3]}, {vL16}")
        A("ds_read_b128 v[212:215], v208")
        A("ds_read_b128 v[216:219], v208 offset:1024")
        A(f"s_mul_i32 {sT[3]}, {sQH}, 86016")
        A(f"s_add_u32 {sT[2]}, {sT[2]}, {sT[3]}")
        A(f"s_add_u32 {sT[2]}, {sT[2]}, {PK_OFF}")
        A(f"buffer_store_dwordx4 v[212:215], {vL16}, {sWS}, {sT[2]} offen sc1")
        A(f"buffer_store_dwordx4 v[216:219], {vL16}, {sWS}, {sT[2]} offen offset:1024 sc1")
        A.settle()
        A.vm = keep
        A(f"{l}:")

    def qkv_phase(self):
        A = self.A
        A(f"s_cmp_lg_u32 {sLAYER}, 0")
        A("s_cbranch_scc1 L_qkv1")
        self.flag_init(0)
        A.lines(self.xdma())
        if self.opt.get("codepf", 1):
            self.code_prefetch()
        KV, Q = self.dma_qkvw_raw()
        n0 = self.opt.get("q0n", 3)
        A.lines(flat(KV[:n0]))
        self.prologue2()
        for r in range(200, 204):
            A(f"v_mov_b32 v{r}, 0")
        self.ts("q0_issued")
        A("@wait_tag x0")
        self.flag_init(1)
        A.lines(self.xreads(0))
        A("@wait_tag x1")
        A.lines(self.xreads(1))
        self.ts("q0_x")
        A.lines(flat(interleave(self.dots(0, 14), KV[n0:n0 + 3])))
        A("s_waitcnt lgkmcnt(0)")
        A("s_barrier")
        A(f"v_lshlrev_b32 {vT[0]}, 3, {vL}")
        A(f"v_add_u32 {vT[0]}, {QSCR}, {vT[0]}")
        A("v_pk_mov_b32 v[208:209], 0, 0")
        A(f"ds_write_b64 {vT[0]}, v[208:209]")
        A.lines(flat(interleave(self.dots(14, 28) + self.xnorm(), KV[n0 + 3:], end=400)))
        self.qkv_addr(True)
        A(f"buffer_load_dword v251, {vL4}, {sDBG}, 0 offen sc1")
        self.ts("q0_norm")
        A("@wait_tag wkv")
        A("s_barrier")
        self.ts("q0_wkv")
        self.qkv_p1(flat1([[g, [], [], [], [], []] for g in Q]))
        lg = list(A.lg)
        A("s_waitcnt vmcnt(0)")
        l = self.lab("chk")
        A(f"v_cmp_gt_u32 vcc, 4, v251")
        A(f"s_cbranch_vccz {l}")
        self.init_poll()
        A(f"{l}:")
        A("s_barrier")
        A.settle()
        A("s_branch L_qkv_p2")
        A("L_qkv1:")
        A.lg = []
        self.poll(6, 14, bias=0)
        self.ts("qkv_polled")
        B = self.frag_loads(lambda i: vr(16 + 4 * i),
                            [f"s_mul_i32 {sT[2]}, {sQTB}, 28672", f"s_add_u32 {sT[2]}, {sT[2]}, {LB0 + XO_OFF}"], 28)
        U = self.opt.get("qU", 12)
        A.lines(flat(B[:U]))
        self.qkv_addr(False)
        rest = []
        for g in B[U:]:
            rest += [g, []]
        S = self.stats_loads(LB0 + SO_OFF, sQTB, 224)
        self.qkv_p1(rest + S)
        A.lines(self.stats_sum(224, "v200", "v201"))
        A.wait(vm=0)
        A.settle()
        assert len(A.lg) <= len(lg)
        A.lg = lg
        A("L_qkv_p2:")
        self.ts("qkv_p1")
        self.qkv_p2()
        l = self.lab("dmp")
        A(f"s_cmp_lg_u32 {sLAYER}, 0")
        A(f"s_cbranch_scc1 {l}")
        self.qkv_dump()
        A(f"{l}:")
        self.ts("qkv_epi")
        self.signal(0)
        self.ts("qkv_sig")
        l = self.lab("res")
        A(f"s_cmp_lg_u32 {sLAYER}, 0")
        A(f"s_cbranch_scc1 {l}")
        self.resid_load()
        A(f"s_cmp_eq_u32 {sW}, 0")
        A(f"s_cbranch_scc1 {l}")
        A(f"s_sub_u32 {sT[7]}, {sW}, 1")
        A(f"s_mul_i32 {sT[0]}, {sT[7]}, 28672")
        A(f"s_add_u32 {sT[0]}, {sT[0]}, {QKVW}")
        A(f"v_lshrrev_b32 {vT[2]}, 5, {vL}")
        A(f"v_lshlrev_b32 {vT[2]}, 8, {vT[2]}")
        A(f"v_add3_u32 {vT[2]}, {vT[2]}, {vTQ}, {sT[0]}")
        A.lines(self.colsum(vT[2], lambda ks: ks * 1024, 512, 208, 176, 224))
        A.lines(self.cs_save(208, sT[7], QSCR, 0))
        A.settle()
        A(f"{l}:")
        self.phase_end("qkv")

    def init_poll(self):
        A = self.A
        l = self.lab("ip")
        A(f"s_mov_b32 {sT[1]}, 0")
        A(f"{l}_loop:")
        A(f"buffer_load_dword v251, {vL4}, {sDBG}, 0 offen sc1")
        A(f"s_add_u32 {sT[1]}, {sT[1]}, 1")
        A(f"s_cmp_gt_u32 {sT[1]}, 0x40000")
        A(f"s_cbranch_scc1 {l}_out")
        A("s_waitcnt vmcnt(0)")
        A(f"v_cmp_gt_u32 vcc, 4, v251")
        A(f"s_cbranch_vccnz {l}_loop")
        A(f"{l}_out:")
        A("s_waitcnt vmcnt(0)")

    def attention(self):
        A = self.A
        self.poll(0, 16)
        self.ts("att_polled")
        Q, S, P, O = 16, 176, 80, 96
        RD = self.opt.get('ring', 5)
        KV = lambda kt, j: ar(16 * (kt % RD) + 4 * j)
        sKV = sT[7]
        A(f"v_mov_b32 {vT[0]}, {LA}")
        A(f"ds_read_b32 v160, {vT[0]}")
        A(f"s_lshl_b32 {sKV}, {sAH}, 6")
        A(f"s_lshl_b32 {sT[2]}, {sW}, 4")
        A(f"s_add_u32 {sKV}, {sKV}, {sT[2]}")
        A(f"s_lshl_b32 {sKV}, {sKV}, 12")
        A(f"s_add_u32 {sKV}, {sKV}, {sLB}")
        A(f"s_add_u32 {sKV}, {sKV}, {KV_OFF}")
        A(f"s_mov_b32 {sT[6]}, {sKV}")
        def kvload(kt, j):
            L = []
            if j == 0 and kt > 0:
                L.append(f"s_add_u32 {sKV}, {sKV}, 4096")
            L.append(f"buffer_load_dwordx4 {KV(kt, j)}, {vL16}, {sWS}, {sKV} offen offset:{1024*j} sc1 @kv{kt}")
            return L
        A.lines(kvload(0, 0) + kvload(0, 1))
        A(f"s_lshl_b32 {sT[2]}, {sAH}, 6")
        A(f"s_lshl_b32 {sT[3]}, {sAQB}, 2")
        A(f"s_add_u32 {sT[2]}, {sT[2]}, {sT[3]}")
        for j in range(4):
            A(f"s_add_u32 {sT[3]}, {sW}, {j}")
            A(f"s_and_b32 {sT[3]}, {sT[3]}, 3")
            A(f"s_add_u32 {sT[3]}, {sT[3]}, {sT[2]}")
            A(f"s_lshl_b32 {sT[3]}, {sT[3]}, 11")
            A(f"s_add_u32 {sT[3]}, {sT[3]}, {sLB}")
            for k in range(2):
                A(f"buffer_load_dwordx4 {vr(Q+8*j+4*k)}, {vL16}, {sWS}, {sT[3]} offen offset:{1024*k} sc1")
            if j == 1:
                A.lines(kvload(0, 2) + kvload(0, 3))
        for i in range(0, 64, 2):
            A(f"v_pk_mov_b32 {vr(O+i,2)}, 0, 0")
        A("v_cmp_lt_u32 vcc, 0xffff, v160")
        lf = self.lab("fast")
        A.settle()
        A(f"s_cbranch_vccz {lf}")
        saved = (list(A.vm), list(A.lg))
        self.att_fallback(Q, S)
        A.vm, A.lg = saved
        A(f"{lf}:")
        def unit(u):
            kt, j = divmod(u, 4)
            if kt == 15:
                j = (j + 1) % 4
            return kt, j
        def smm(u, k):
            kt, j = unit(u)
            s = vr(S + 16 * (u % 3), 16)
            return [f"{MF} {s}, {KV(kt, k)}, {vr(Q+8*j+4*k)}, {s if k else '0'}"]
        def pv(u, k):
            kt, j = unit(u)
            o = vr(O + 16 * j, 16)
            return f"{MF} {o}, {KV(kt, 2+k)}, {vr(P+4*k)}, {o}"
        def ex(u, g):
            s = S + 16 * (u % 3)
            return [f"v_exp_f32 v{s+4*g+i}, v{s+4*g+i}" for i in range(4)]
        def cv(u, g):
            s = S + 16 * (u % 3)
            return [f"v_cvt_pk_bf16_f32 v{P+2*g+i}, v{s+4*g+2*i}, v{s+4*g+2*i+1}" for i in range(2)]
        def redw(j):
            L = [f"s_add_u32 {sT[2]}, {sW}, {j}", f"s_and_b32 {sT[2]}, {sT[2]}, 3", f"s_mul_i32 {sT[2]}, {sT[2]}, 12288",
                 f"s_add_u32 {sT[2]}, {sT[2]}, {LC + (j-1)*4096}", f"v_add_u32 {vT[j-1]}, {sT[2]}, {vL16}"]
            return L, [f"ds_write_b128 {vT[j-1]}, {vr(O+16*j+4*i)} offset:{1024*i}" for i in range(4)]
        slot = [[] for _ in range(256)]
        def kvbatch(kt, js):
            return [f"buffer_load_dwordx4 {KV(kt, j)}, {vL16}, {sWS}, {sKV} offen offset:{1024*j} sc1 @kv{kt}" for j in js]
        inc = f"s_add_u32 {sKV}, {sKV}, 4096"
        for kt in range(1, 16):
            u = (kt - 1) if kt < RD else 4 * (kt - RD + 1)
            slot[4 * u + 1].append(inc)
            slot[4 * u + 2] += kvbatch(kt, range(4))
            if kt >= 3:
                slot[4 * (4 * kt - 2) + 3].append(f"@wait_tag kv{kt}")
        jobs = []
        sD = ["s98", "s99", "s100", "s101"]
        for srd, base in ((sWO, LA), (sW1, LBB)):
            for b in range(4):
                n = 4 if b < 3 else 2
                if b == 0:
                    pre = [f"s_mul_i32 {sD[0]}, {sW}, {14*8*896}", f"s_lshl_b32 {sT[3]}, {sFT}, 7",
                           f"s_add_u32 {sD[0]}, {sD[0]}, {sT[3]}", f"s_mul_i32 {sT[3]}, {sW}, {14*1024}",
                           f"s_add_u32 m0, {sT[3]}, {base}"]
                    pre += [f"s_add_u32 {sD[i]}, {sD[0]}, {i*6144}" for i in range(1, 4)]
                else:
                    pre = [f"s_add_u32 {sD[i]}, {sD[i]}, 28672" for i in range(n)] + ["s_add_u32 m0, m0, 4096"]
                jobs.append((pre, [f"buffer_load_dwordx4 {vDM}, {srd}, {sD[i]} offen offset:{1024*i} lds @dma" for i in range(n)]))
        if self.opt.get("warm", 1):
            for srd, n, per in ((sW2, 4, 3136), (sW3, 13, 12544)):
                for b in range(0, n, 4):
                    if b == 0:
                        pre = [f"s_lshl_b32 {sT[3]}, {sSLOT}, 2", f"s_add_u32 {sT[3]}, {sT[3]}, {sW}", f"s_mul_i32 {sT[3]}, {sT[3]}, {per}"]
                    else:
                        pre = [f"s_add_u32 {sT[3]}, {sT[3]}, 4096"]
                    jobs.append((pre, [f"buffer_load_dwordx4 v[64:67], {vL16}, {srd}, {sT[3]} offen offset:{1024*i} @nodst"
                                       for i in range(min(4, n - b))]))
        pos = 4 * 6
        step = (4 * 58 - pos) // len(jobs)
        for i, (pre, batch) in enumerate(jobs):
            p = max(pos, 4 * 6 + i * step)
            for x in pre:
                while slot[p]:
                    p += 1
                slot[p].append(x)
            p += 1
            while slot[p]:
                p += 1
            slot[p] += batch
            pos = p + 1
        assert pos < 4 * 60
        A.lines(smm(0, 0))
        A.lines(smm(0, 1))
        self.ts("att_first")
        for u in range(64):
            if u >= 61:
                a, w_ = redw(u - 60)
                slot[4 * u + 2] += a
                if u < 63:
                    slot[4 * u + 4] += w_[:2]
                    slot[4 * u + 5] += w_[2:]
                else:
                    last_w = w_
            ms = [smm(u + 1, 0) if u < 63 else [], smm(u + 1, 1) if u < 63 else [], [pv(u - 1, 1)] if u else [], [pv(u, 0)]]
            for g in range(4):
                A.lines(ms[g])
                A.lines(slot[4 * u + g])
                A.lines(ex(u, g))
                if (u, g) != (63, 3):
                    A.lines(cv(u, g))
        A.lines(last_w[:2])
        A.lines(cv(63, 3))
        A.lines(last_w[2:])
        A(pv(63, 1))
        self.ts("att_main")
        A(f"s_mul_i32 {sT[2]}, {sW}, 12288")
        A(f"s_add_u32 {sT[2]}, {sT[2]}, {LC}")
        A(f"v_add_u32 {vT[3]}, {sT[2]}, {vL16}")
        A("s_waitcnt lgkmcnt(0)")
        A("s_barrier")
        for j in range(3):
            for i in range(4):
                A(f"ds_read_b128 {vr(160+16*j+4*i)}, {vT[3]} offset:{4096*j+1024*i}")
        A(f"s_lshl_b32 {sT[2]}, {sAQB}, 2")
        A(f"s_add_u32 {sT[2]}, {sT[2]}, {sW}")
        A(f"s_lshl_b32 {sT[2]}, {sT[2]}, 15")
        A(f"s_lshl_b32 {sT[3]}, {sAH}, 11")
        A(f"s_add_u32 {sT[2]}, {sT[2]}, {sT[3]}")
        A(f"s_add_u32 {sT[2]}, {sT[2]}, {sLB}")
        A(f"s_add_u32 {sT[2]}, {sT[2]}, {O_OFF}")
        for j in range(3):
            for i in range(0, 16, 2):
                A(pk("add", O + i, O + i, 160 + 16 * j + i))
        A(f"v_mov_b32 {vT[0]}, v{O+12}")
        A(f"v_mov_b32 {vT[2]}, v{O+12}")
        A(f"v_permlane32_swap_b32 {vT[0]}, {vT[2]}")
        A(f"v_rcp_f32 {vT[2]}, {vT[2]}")
        for i in range(0, 16, 2):
            A(pk("mul", O + i, O + i, ("b", 12)))
        A.lines(self.pack_store(O, 16, sT[2], 0, lambda d, r: [f"v_cndmask_b32 v{r}, v{r}, 0, {sHI}"] if d >= 6 else []))
        self.ts("att_epi")
        self.signal(1)
        self.ts("att_sig")
        self.phase_end("att")

    def att_fallback(self, Q, S):
        A = self.A
        A.join()
        M = 164
        for j in range(4):
            A(f"v_mov_b32 v{M+j}, 0xff800000")
        A(f"s_mov_b32 {sT[5]}, 0")
        A(f"s_mov_b32 {sT[4]}, {sT[6]}")
        A.settle()
        l = self.lab("fb")
        A(f"{l}:")
        A(f"buffer_load_dwordx4 v[168:171], {vL16}, {sWS}, {sT[4]} offen sc1")
        A(f"buffer_load_dwordx4 v[172:175], {vL16}, {sWS}, {sT[4]} offen offset:1024 sc1")
        for j in range(4):
            s = vr(S, 16)
            A(f"{MF} {s}, v[168:171], {vr(Q+8*j)}, 0")
            A(f"{MF} {s}, v[172:175], {vr(Q+8*j+4)}, {s}")
            for i in range(8):
                A(f"v_max3_f32 v{M+j}, v{M+j}, v{S+2*i}, v{S+2*i+1}")
        A(f"s_add_u32 {sT[4]}, {sT[4]}, 4096")
        A(f"s_add_u32 {sT[5]}, {sT[5]}, 1")
        A(f"s_cmp_lt_u32 {sT[5]}, 16")
        A.join()
        A(f"s_cbranch_scc1 {l}")
        for j in range(4):
            A(f"v_mov_b32 {vT[0]}, v{M+j}")
            A(f"v_permlane32_swap_b32 {vT[0]}, v{M+j}")
            A(f"v_max_f32 v{M+j}, v{M+j}, {vT[0]}")
            A(f"s_add_u32 {sT[2]}, {sW}, {j}")
            A(f"s_and_b32 {sT[2]}, {sT[2]}, 3")
            A(f"s_lshl_b32 {sT[2]}, {sT[2]}, 10")
            A(f"s_add_u32 {sT[2]}, {sT[2]}, {LC}")
            A(f"v_add_u32 v{168+j}, {sT[2]}, {vL4}")
            A(f"s_lshl_b32 {sT[3]}, {sW}, 8")
            A(f"v_add_u32 {vT[1]}, {sT[3]}, v{168+j}")
            A(f"ds_write_b32 {vT[1]}, v{M+j}")
        A("s_waitcnt lgkmcnt(0)")
        A("s_barrier")
        for j in range(4):
            for w in range(4):
                A(f"ds_read_b32 v{S+4*j+w}, v{168+j} offset:{256*w}")
        for j in range(4):
            b = S + 4 * j
            A(f"v_max3_f32 v{b}, v{b}, v{b+1}, v{b+2}")
            A(f"v_max_f32 v{b}, v{b}, v{b+3}")
            A(f"v_sub_f32 v{b}, 0, v{b}")
            A(f"v_and_b32 v{b+1}, 0xffff0000, v{b}")
            A(f"v_sub_f32 v{b}, v{b}, v{b+1}")
            A(f"v_and_b32 v{b+2}, 0xffff0000, v{b}")
            A(f"v_sub_f32 v{b}, v{b}, v{b+2}")
            A(f"v_lshrrev_b32 v{b}, 16, v{b}")
            A(f"v_lshrrev_b32 v{b+1}, 16, v{b+1}")
            A(f"v_or_b32 v{b+1}, v{b+1}, v{b+2}")
            A(f"v_cndmask_b32 v{Q+8*j+6}, v{Q+8*j+6}, v{b+1}, {sHI}")
            A(f"v_cndmask_b32 v{Q+8*j+7}, v{Q+8*j+7}, v{b}, {sHI}")
        A.join()
        A("s_barrier")

    def small_pre(self, slot, nks, k4_of):
        A = self.A
        a0, a1 = vT[0], vT[1]
        khstride = k4_of(nks) * 512
        A(f"s_mul_i32 {sT[2]}, {sKH}, {khstride + 256}")
        A(f"s_add_u32 {sT[2]}, {sT[2]}, {slot}")
        A(f"v_add_u32 {a0}, {sT[2]}, {vTR}")
        A(f"v_xor_b32 {a1}, 256, {a0}")
        for k in range(nks):
            for j in range(2):
                A.lines(self.tr(("a", 8 * k + 4 * j), a1 if j else a0, k4_of(k) * 512, 1024))

    def small_main(self, nks, B, late, dma, shadow=None, post=None):
        A = self.A
        U = self.opt.get("sU", 8)
        A.lines(flat(B[:U]))
        q = list(B[U:]) + list(late)
        dma = list(dma)
        nd1 = self.opt.get("sD1", 5)
        mm = []
        for k in range(nks):
            for j in (1, 0):
                acc = vr(128 + 16 * j, 16)
                g = [f"{MF} {acc}, {ar(8*k+4*j)}, {vr(16+4*k)}, {acc if k else '0'}"]
                if q:
                    g += q.pop(0)
                elif nd1 and 2 * k >= nks:
                    g += dma.pop(0)
                    nd1 -= 1
                mm.append(g)
        fine = self.opt.get("fine", 0)
        A.lines(flat(mm[:1]))
        if fine:
            self.ts("s_first")
        A.lines(flat(mm[1:nks]))
        if fine:
            self.ts("s_half")
        A.lines(flat(mm[nks:]) + flat(q))
        if fine:
            self.ts("s_mfma")
        A(f"s_lshl_b32 {sT[2]}, {sW}, 12")
        A(f"s_add_u32 {sT[2]}, {sT[2]}, {LC}")
        A(f"v_add_u32 {vT[0]}, {sT[2]}, {vL16}")
        A(f"v_xor_b32 {vT[1]}, 8192, {vT[0]}")
        for i in range(4):
            A(f"ds_write_b128 {vT[0]}, {vr(144+4*i)} offset:{1024*i}")
        nd2 = self.opt.get("sD2", 3)
        A.lines(flat(dma[:nd2]))
        dma = dma[nd2:]
        A.lines(shadow or [])
        A("s_waitcnt lgkmcnt(0)")
        if fine:
            self.ts("s_prebar")
        A("s_barrier")
        if fine:
            self.ts("s_bar")
        for i in range(4):
            A(f"ds_read_b128 {vr(160+4*i)}, {vT[1]} offset:{1024*i}")
        A.lines(post or [])
        for i in range(0, 16, 2):
            A(pk("add", 128 + i, 128 + i, 160 + i))
        return dma

    def wo_phase(self):
        A = self.A
        self.small_pre(LA, 16, lambda k: 7 * (k >> 1) + 4 * (k & 1))
        l = self.lab("wocs")
        A(f"s_cmp_lg_u32 {sLAYER}, 0")
        A(f"s_cbranch_scc1 {l}_1")
        self.resid_unpack()
        A(f"s_lshl_b32 {sT[2]}, {sKH}, 8")
        A(f"s_add_u32 {sT[2]}, {sT[2]}, {LBB}")
        A(f"v_add_u32 {vT[2]}, {sT[2]}, {vTR}")
        A.lines(self.colsum(vT[2], lambda ks: ks * 2048, 1024, 208, 176, 224))
        A.lines(self.cs_save(208, sKH, W1SCR, 1536))
        A.settle()
        A(f"s_branch {l}_2")
        A(f"{l}_1:")
        A.lines(self.cs_restore(512, W3SCR, 32))
        A.lines(self.cs_restore(1536, W1SCR, 16))
        A.settle()
        A(f"{l}_2:")
        self.ts("wo_pre")
        self.poll(1, 16)
        self.ts("wo_polled")
        B = self.frag_loads(lambda i: vr(16 + 4 * i),
                            [f"s_lshl_b32 {sT[2]}, {sTB32}, 15", f"s_lshl_b32 {sT[4]}, {sKH}, 14",
                             f"s_add_u32 {sT[2]}, {sT[2]}, {sT[4]}", f"s_add_u32 {sT[2]}, {sT[2]}, {sLB}",
                             f"s_add_u32 {sT[2]}, {sT[2]}, {O_OFF}"], 16)
        dma = self.dma_tile64(sW2, 896, [f"s_lshl_b32 {sT[3]}, {sFT}, 7"], LA, vDM)
        sh = [f"v_accvgpr_read_b32 v{176+i}, a{aRES+i}" for i in range(16)]
        sh += [pk("add", 128 + i, 128 + i, 176 + i) for i in range(0, 16, 2)]
        dma = self.small_main(16, B, [], dma, sh, self.tile_off(XM_OFF, sT[2]))
        self.ts("wo_main")
        A.lines(self.pack_store(128, 16, sT[2]))
        A.lines(self.stats_out(128, SM_OFF, 24))
        self.ts("wo_epi")
        self.signal(2, dma + [f"v_accvgpr_write_b32 a{aRES+i}, v{128+i}" for i in range(16)])
        self.ts("wo_sig")
        self.phase_end("wo")

    def act_base(self, off):
        return [f"s_mul_i32 {sT[2]}, {sTB32}, 28672", f"s_mul_i32 {sT[4]}, {sKH}, 14336",
                f"s_add_u32 {sT[2]}, {sT[2]}, {sT[4]}", f"s_add_u32 {sT[2]}, {sT[2]}, {sLB}",
                f"s_add_u32 {sT[2]}, {sT[2]}, {off}"]

    def w1_phase(self):
        A = self.A
        self.small_pre(LBB, 14, lambda k: 4 * k)
        A.lines(self.dm_lane(vT[4], 3584))
        A(f"s_lshl_b32 {sT[2]}, {sKH}, 7")
        A(f"s_add_u32 {sT[2]}, {sT[2]}, {W1SCR}")
        A(f"v_lshrrev_b32 {vT[2]}, 5, {vL}")
        A(f"v_lshlrev_b32 {vT[2]}, 4, {vT[2]}")
        A(f"v_add_u32 {vT[2]}, {sT[2]}, {vT[2]}")
        for i in range(4):
            A(f"ds_read_b128 {vr(208+4*i)}, {vT[2]} offset:{32*i}")
        self.ts("w1_pre")
        A(f"v_lshrrev_b32 {vT[2]}, 3, {vL}")
        A(f"s_sub_u32 {sT[2]}, {sTB64}, 1")
        A(f"v_add_u32 {vT[2]}, {sT[2]}, {vT[2]}")
        A(f"v_and_b32 {vS3}, 3, {vT[2]}")
        A(f"v_mul_u32_u24 {vS3}, 7, {vS3}")
        A(f"v_and_b32 {vT[3]}, 7, {vL}")
        A(f"v_add_u32 {vS3}, {vS3}, {vT[3]}")
        A(f"v_lshlrev_b32 {vS3}, 10, {vS3}")
        A(f"v_bfe_u32 {vT[2]}, {vT[2]}, 2, 3")
        A(f"v_lshl_add_u32 {vS3}, {vT[2]}, 7, {vS3}")
        self.poll(2, 7)
        self.ts("w1_polled")
        A(f"s_add_u32 {sT[7]}, {sLB}, {SM_OFF}")
        B = self.frag_loads(lambda i: vr(16 + 4 * i), self.act_base(XM_OFF), 14)
        S = self.stats_loads(sT[7], sTB32, 224)
        dma = self.dma_tile64(sW3, 3584, [f"s_lshl_b32 {sT[3]}, {sF3}, 8"], LBB, vT[4])
        s1, s2, var, R, ka, kb, iR = "v240", "v241", "v242", "v243", 244, 246, 248
        sh = self.stats_sum(224, s1, s2) + self.stats_fin(s1, s2, vM, var)
        sh += [f"v_add_f32 {s1}, {sC[1]}, {var}", f"v_rsq_f32 {vR1}, {s1}", f"v_mul_f32 {var}, {var}, {vR1}",
               f"v_fma_f32 {var}, {var}, {vR1}, {sC[1]}", f"v_rsq_f32 {R}, {var}", f"v_mul_f32 {R}, {R}, {vR1}"]
        sh += self.gelu_consts(R, ka, kb, iR)
        dma = self.small_main(14, B, S, dma, sh, self.tile_off(H_OFF, sT[2]))
        self.ts("w1_main")
        g = self.gelu_pre(128, 208, 160, 8, ka, kb) + self.gelu_post(128, 160, iR, True)
        A.lines(flat(interleave(g, dma[:self.opt.get("w1D3", 6)])))
        dma = dma[self.opt.get("w1D3", 6):]
        A.lines(self.pack_store(128, 16, sT[2]))
        self.ts("w1_epi")
        self.signal(3, dma + ["s_nop 0"])
        self.ts("w1_sig")
        self.phase_end("w1")

    def w2_phase(self):
        A = self.A
        self.small_pre(LA, 14, lambda k: 4 * k)
        for gi in range(2):
            d, t = f"v{240+gi}", vT[2]
            A(f"s_add_u32 {sT[2]}, {sKH}, 1")
            if gi == 0:
                A(f"s_sub_u32 {sT[2]}, 0, {sT[2]}")
            A(f"s_lshl_b32 {sT[3]}, {sTB32}, 5")
            A(f"s_add_u32 {sT[2]}, {sT[2]}, {sT[3]}")
            A(f"v_and_b32 {t}, 31, {vL}")
            A(f"v_add_u32 {t}, {sT[2]}, {t}")
            A(f"v_cmp_gt_u32 vcc, 0x800, {t}")
            A(f"v_lshrrev_b32 {d}, 5, {t}")
            A(f"v_mul_u32_u24 {d}, 28672, {d}")
            A(f"v_and_b32 {t}, 31, {t}")
            A(f"v_lshlrev_b32 {t}, 4, {t}")
            A(f"v_add_u32 {d}, {d}, {t}")
            A(f"v_lshrrev_b32 {t}, 5, {vL}")
            A(f"v_lshlrev_b32 {t}, 9, {t}")
            A(f"v_add_u32 {d}, {d}, {t}")
            A(f"v_mov_b32 {t}, {OOB}")
            A(f"v_cndmask_b32 {d}, {t}, {d}, vcc")
        A.lines(self.dm_lane(vT[4], 3584))
        for i in range(16):
            A(f"v_accvgpr_read_b32 v{208+i}, a{aRES+i}")
        A(f"v_mov_b32 {vT[2]}, {vR1}")
        for i in range(0, 16, 2):
            A(pk("add", 224 + i, 208 + i, ("b", 8), neg=[0, 1]))
        for i in range(0, 16, 2):
            A(pk("mul", 224 + i, 224 + i, ("b", 12)))
        self.ts("w2_pre")
        self.poll(3, sN3)
        self.ts("w2_polled")
        B = self.frag_loads(lambda i: vr(16 + 4 * i),
                            [f"s_mul_i32 {sT[2]}, {sKH}, 14336", f"s_add_u32 {sT[2]}, {sT[2]}, {sLB}",
                             f"s_add_u32 {sT[2]}, {sT[2]}, {H_OFF}"], 14, vaddr=lambda i: f"v{240 + i//7}")
        dma = self.dma_tile64(sW3, 3584, [f"s_lshl_b32 {sT[3]}, {sF3}, 8", f"s_add_u32 {sT[3]}, {sT[3]}, 128"], LA, vT[4])
        sh = [pk("add", 128 + i, 128 + i, 224 + i) for i in range(0, 16, 2)]
        dma = self.small_main(14, B, [], dma, sh, self.tile_off(X1_OFF, sT[2]))
        self.ts("w2_main")
        A.lines(self.pack_store(128, 16, sT[2]))
        A.lines(self.stats_out(128, S1_OFF, 24))
        self.ts("w2_epi")
        aft = [pk("add", 208 + i, 208 + i, 128 + i) for i in range(0, 16, 2)]
        aft += [f"v_accvgpr_write_b32 a{aRES+i}, v{208+i}" for i in range(16)]
        self.signal(4, dma + aft)
        self.ts("w2_sig")
        self.phase_end("w2")

    @staticmethod
    def w4_page(i):
        if i < 5:
            return 0, i
        if i < 12:
            return 1, i - 5
        if i < 19:
            return 2, i - 12
        if i < 24:
            return 0, i - 19
        return 1, i - 24

    W4REG = ((LC, 10240), (LBB, 14336), (LA, 14336))

    def w4_dma(self, steps):
        G = []
        last = None
        for i in steps:
            reg, pg = self.w4_page(i)
            base, stride = self.W4REG[reg]
            for hf in range(2):
                L = []
                if reg != last:
                    L += [f"s_mul_i32 s63, {sW}, {stride}"]
                    last = reg
                L += [f"s_add_u32 {sT[3]}, {sG4}, {(16*i + 8*hf)*896}", f"s_add_u32 m0, s63, {base + pg*2048 + hf*1024}",
                      f"buffer_load_dwordx4 {vDM}, {sW4}, {sT[3]} offen lds @w4_{i}"]
                G.append(L)
        return G

    def w3_phase(self):
        A = self.A
        l = self.lab("w3cs")
        A(f"s_cmp_lg_u32 {sLAYER}, 0")
        A(f"s_cbranch_scc1 {l}")
        A("s_waitcnt vmcnt(0)")
        A("s_barrier")
        A(f"s_cmp_lt_u32 {sW}, 2")
        A(f"s_cselect_b32 {sT[2]}, {LBB}, {LA}")
        A(f"s_lshl_b32 {sT[3]}, {sNI}, 8")
        A(f"s_add_u32 {sT[2]}, {sT[2]}, {sT[3]}")
        A(f"v_add_u32 {vT[2]}, {sT[2]}, {vTR}")
        A.lines(self.colsum(vT[2], lambda ks: ks * 2048, 1024, 208, 176, 224))
        A.lines(self.cs_save(208, sW, W3SCR, 512))
        A.settle()
        A(f"{l}:")
        vB_, vA_, vS_ = "v250", "v251", "v252"
        A(f"v_lshrrev_b32 {vS_}, 5, {vL}")
        A(f"v_lshlrev_b32 {vS_}, 4, {vS_}")
        A(f"v_add_u32 {vS_}, {W3SCR}, {vS_}")
        A(f"v_add_u32 {vB_}, {LBB}, {vTR}")
        A(f"v_add_u32 {vA_}, {LA}, {vTR}")
        A(f"s_mul_i32 {sG4}, {sW}, {448*896}")
        A(f"s_lshl_b32 {sT[3]}, {sFT}, 7")
        A(f"s_add_u32 {sG4}, {sG4}, {sT[3]}")
        self.ts("w3_pre")
        self.poll(4, 14)
        self.ts("w3_polled")
        sTB, sO = sT[7], sT[1]
        A(f"s_lshl_b32 {sTB}, {sT128}, 2")
        A(f"s_add_u32 {sTB}, {sTB}, {sW}")
        B = self.frag_loads(lambda i: ar(4 * i),
                            [f"s_mul_i32 {sT[2]}, {sTB}, 28672", f"s_add_u32 {sT[2]}, {sT[2]}, {sLB}",
                             f"s_add_u32 {sT[2]}, {sT[2]}, {X1_OFF}"], 28)
        U = self.opt.get("w3U", 8)
        A.lines(flat(B[:U]))
        A(f"s_add_u32 {sT[6]}, {sLB}, {S1_OFF}")
        S = self.stats_loads(sT[6], sTB, 224)
        A(f"s_mul_i32 {sO}, {sTB}, 114688")
        A(f"s_lshl_b32 {sT[3]}, {sF3}, 13")
        A(f"s_add_u32 {sO}, {sO}, {sT[3]}")
        A(f"s_add_u32 {sO}, {sO}, {sLB}")
        A(f"s_add_u32 {sO}, {sO}, {G_OFF}")
        seq = [(i & 1, i >> 1) for i in range(56)] + [(mt, ks) for mt in (2, 3) for ks in range(28)]
        ACC, STG, CS, WB, PT = 16, 80, (112, 128), (144, 160), 176
        D = 6
        def rd(i):
            if i >= 112:
                return []
            mt, ks = seq[i]
            return self.tr(("v", STG + 4 * (i % 8)), vB_ if mt < 2 else vA_, (mt & 1) * 256 + ks * 2048, 1024)
        def mm(i):
            mt, ks = seq[i]
            acc = vr(ACC + 16 * mt, 16)
            return [f"{MF} {acc}, {vr(STG+4*(i%8))}, {ar(4*ks)}, {acc if ks else '0'}"] + rd(i + D)
        def csrd(mt):
            return [f"ds_read_b128 {vr(CS[mt&1]+4*i)}, {vS_} offset:{128*mt+32*i}" for i in range(4)]
        s1, s2, var, R, m, ka, kb, iR = "v240", "v241", "v242", "v243", 244, 246, 248, 238
        def pre(mt):
            return self.gelu_pre(ACC + 16 * mt, CS[mt & 1], WB[mt & 1], m, ka, kb)
        def post(mt, packed):
            L = self.gelu_post(ACC + 16 * mt, WB[mt & 1], iR, packed)
            if mt == 2:
                L.append(f"s_add_u32 {sO}, {sO}, 4096")
            return L + self.pack_store(ACC + 16 * mt, PT + 8 * (mt & 1), sO, (mt & 1) * 2048)
        for i in range(D):
            A.lines(rd(i))
        q = []
        for g in B[U:]:
            q += [g, []]
        q += S
        dC = self.w4_dma(range(5))
        st = self.stats_sum(224, s1, s2) + self.stats_fin(s1, s2, f"v{m}", var)
        st += [f"v_add_f32 {var}, {sC[1]}, {var}", f"v_rsq_f32 {R}, {var}"] + self.gelu_consts(R, ka, kb, iR)
        for i in range(56):
            A.lines(mm(i))
            if q:
                A.lines(q.pop(0))
            elif dC:
                A.lines(dC.pop(0))
        A.lines(csrd(0) + csrd(1))
        A.lines(flat(dC))
        A.lines(st)
        self.ts("w3_p1")
        A("s_barrier")
        A.lines(pre(0) + pre(1))
        A.lines(csrd(2))
        dB = self.w4_dma(range(5, 12))
        f = post(0, False) + post(1, False)
        f = interleave(f, dB[:8])
        A.lines(flat(interleave([mm(i) for i in range(56, 84)], f, end=27)))
        self.ts("w3_p2")
        A.lines(csrd(3))
        A.lines(pre(2))
        f = interleave(post(2, False), dB[8:])
        A.lines(flat(interleave([mm(i) for i in range(84, 112)], f, end=27)))
        self.ts("w3_p3")
        A("s_barrier")
        dA = self.w4_dma(range(12, 19))
        nA = self.opt.get("w3A", 14)
        A.lines(flat(interleave(pre(3) + post(3, True), dA[:nA], end=60)))
        self.ts("w3_epi")
        self.signal(5, dA[nA:] + ["s_nop 0"])
        self.ts("w3_sig")
        self.phase_end("w3")

    def w4_phase(self):
        A = self.A
        AD = 224
        for r, (base, stride) in enumerate(self.W4REG):
            A(f"s_mul_i32 {sT[2]}, {sW}, {stride}")
            A(f"s_lshl_b32 {sT[3]}, {sKH}, 8")
            A(f"s_add_u32 {sT[2]}, {sT[2]}, {sT[3]}")
            A(f"s_add_u32 {sT[2]}, {sT[2]}, {base}")
            A(f"v_add_u32 v{AD+2*r}, {sT[2]}, {vTR}")
            A(f"v_xor_b32 v{AD+2*r+1}, 256, v{AD+2*r}")
        sB = [sT[6], sT[7]]
        NS = 9 if self.opt.get("w4stage", 1) else 0
        for i in range(NS):
            reg, pg = self.w4_page(i)
            for ja in range(2):
                A.lines(self.tr(("a", 112 + 8 * i + 4 * ja), f"v{AD+2*reg+ja}", pg * 2048, 1024))
        if NS:
            A("s_waitcnt lgkmcnt(0)")
            A.lines(flat(self.w4_dma(range(19, 28))))
        self.ts("w4_pre")
        self.poll(5, 14)
        self.ts("w4_polled")
        for jb in range(2):
            A(f"s_xor_b32 {sB[jb]}, {sTB32}, {jb}")
            A(f"s_mul_i32 {sB[jb]}, {sB[jb]}, 114688")
            A(f"s_mul_i32 {sT[4]}, {sW}, 28672")
            A(f"s_add_u32 {sB[jb]}, {sB[jb]}, {sT[4]}")
            A(f"s_add_u32 {sB[jb]}, {sB[jb]}, {sLB}")
            A(f"s_add_u32 {sB[jb]}, {sB[jb]}, {G_OFF}")
        def breg(i, jb):
            return vr(16 + 8 * (i % 14) + 4 * jb)
        def bload(i):
            G = []
            for jb in range(2):
                L = []
                if i and i % 4 == 0:
                    L.append(f"s_add_u32 {sB[jb]}, {sB[jb]}, 4096")
                L.append(f"buffer_load_dwordx4 {breg(i, jb)}, {vL16}, {sWS}, {sB[jb]} offen offset:{(i%4)*1024} sc1")
                G.append(L)
            return G
        PB = self.opt.get("w4PB", 6)
        for i in range(PB):
            A.lines(flat(bload(i)))
        def rd(i):
            G = []
            if i < NS:
                return G
            reg, pg = self.w4_page(i)
            for ja in range(2):
                L = [f"@wait_tag w4_{i}"] if i >= 19 and ja == 0 else []
                G.append(L + self.tr(("v", 192 + 8 * (i % 4) + 4 * ja), f"v{AD+2*reg+ja}", pg * 2048, 1024))
            return G
        D = 3
        for i in range(D):
            A.lines(flat(rd(i)))
        refill = {i + 1: 19 + i for i in range(5)}
        refill.update({6 + i: 24 + i for i in range(4)})
        for i in range(28):
            mms = []
            order = (0, 1, 2, 3) if i < 27 else (1, 2, 3, 0)
            for j in order:
                ja, jb = j >> 1, j & 1
                acc = vr(128 + 16 * j, 16)
                wreg = ar(112 + 8 * i + 4 * ja) if i < NS else vr(192 + 8 * (i % 4) + 4 * ja)
                mms.append(f"{MF} {acc}, {wreg}, {breg(i, jb)}, {acc if i else '0'}")
            fill = []
            if i + PB < 28:
                fill += bload(i + PB)
            if i in refill and not NS:
                fill += self.w4_dma([refill[i]])
            if i + D < 28:
                fill += rd(i + D)
            A.lines(flat(interleave(mms, fill)))
        self.ts("w4_main")
        A(f"s_mul_i32 {sT[2]}, {sW}, 14336")
        A(f"v_add_u32 {vT[0]}, {sT[2]}, {vL16}")
        for j in (1, 2, 3):
            A(f"s_xor_b32 {sT[2]}, {sW}, {j}")
            A(f"s_mul_i32 {sT[2]}, {sT[2]}, 14336")
            A(f"v_add_u32 {vT[j]}, {sT[2]}, {vL16}")
        for i in range(16):
            A(f"v_accvgpr_read_b32 v{64+i}, a{aRES+i}")
        for j in (1, 2, 3):
            for i in range(4):
                A(f"ds_write_b128 {vT[0]}, {vr(128+16*j+4*i)} offset:{LA + (j-1)*4096 + 1024*i}")
        for i in range(0, 16, 2):
            A(pk("add", 128 + i, 128 + i, 64 + i))
        A("s_waitcnt lgkmcnt(0)")
        A("s_barrier")
        for j in (1, 2, 3):
            for i in range(4):
                A(f"ds_read_b128 {vr(16*j+4*i)}, {vT[j]} offset:{LA + (j-1)*4096 + 1024*i}")
        for j in (1, 2, 3):
            for i in range(0, 16, 2):
                A(pk("add", 128 + i, 128 + i, 16 * j + i))
        A.join()
        A(f"s_cmp_lg_u32 {sLAYER}, 0")
        A("s_cbranch_scc1 L_final")
        dq = self.dma_qkvw_packed()
        nq = self.opt.get("w4Q", 6)
        e = self.tile_off(XO_OFF, sT[2]) + self.pack_store(128, 16, sT[2]) + self.stats_out(128, SO_OFF, 24)
        A.lines(flat(dq[:nq]))
        A.lines(e)
        self.ts("w4_epi")
        self.signal(6, dq[nq:] + [f"v_accvgpr_write_b32 a{aRES+i}, v{128+i}" for i in range(16)])
        self.ts("w4_sig")

    def final_store(self):
        A = self.A
        A("L_final:")
        for d in range(8):
            A(f"v_cvt_pk_bf16_f32 v{16+d}, v{128+2*d}, v{128+2*d+1}")
        for b in (16, 20):
            A(f"v_permlane32_swap_b32 v{b}, v{b+2}")
            A(f"v_permlane32_swap_b32 v{b+1}, v{b+3}")
        d, t = vT[0], vT[1]
        A(f"v_and_b32 {d}, 31, {vL}")
        A(f"v_mul_u32_u24 {d}, 896, {d}")
        A(f"v_lshrrev_b32 {t}, 5, {vL}")
        A(f"v_lshlrev_b32 {t}, 4, {t}")
        A(f"v_add_u32 {d}, {d}, {t}")
        A(f"s_mul_i32 {sT[2]}, {sTB32}, {32*896}")
        A(f"s_lshl_b32 {sT[3]}, {sFT}, 7")
        A(f"s_add_u32 {sT[2]}, {sT[2]}, {sT[3]}")
        A(f"s_lshl_b32 {sT[3]}, {sKH}, 6")
        A(f"s_add_u32 {sT[2]}, {sT[2]}, {sT[3]}")
        A(f"buffer_store_dwordx4 v[16:19], {d}, {sOUT}, {sT[2]} offen")
        A(f"buffer_store_dwordx4 v[20:23], {d}, {sOUT}, {sT[2]} offen offset:32")
        self.ts("final")

    def idle(self):
        A = self.A
        A("L_idle:")
        A.vm, A.lg = [], []
        widx = [f"s_sub_u32 {sT[3]}, {sSLOT}, 28", f"s_lshl_b32 {sT[3]}, {sT[3]}, 2", f"s_add_u32 {sT[3]}, {sT[3]}, {sW}"]
        self.poll(2, 1)
        for i, g in enumerate(self.touch(sW4, widx, 784, 16) if self.opt.get("idle", 1) else []):
            A.lines([x.replace("v16,", f"v{16+i},") for x in g])
        A(f"s_cmp_lg_u32 {sLAYER}, 0")
        A("s_cbranch_scc1 L_finish")
        self.poll(5, 1)
        for i, g in enumerate(self.touch(sWS, widx, 672, 16, base=PK_OFF) if self.opt.get("idle", 1) else []):
            A.lines([x.replace("v16,", f"v{16+i},") for x in g])
        A.lines(flat(self.dma_qkvw_packed()))
        A.settle()

    def build(self):
        A = self.A
        self.prologue()
        A("L_layer:")
        self.qkv_phase()
        self.attention()
        A(f"s_cmp_eq_u32 {sACT}, 0")
        A("s_cbranch_scc1 L_idle" if not self.stop else "s_cbranch_scc1 L_idle2")
        self.wo_phase()
        self.w1_phase()
        self.w2_phase()
        self.w3_phase()
        self.w4_phase()
        A("s_branch L_next")
        if self.stop:
            A("L_idle2:")
            A(f"s_cmp_eq_u32 {sLAYER}, {self.stop[1]}")
            A("s_cbranch_scc1 L_finish")
        self.idle()
        A("L_next:")
        self.phase_end("w4")
        self.ts_store()
        A(f"s_mov_b32 {sLAYER}, 1")
        A(f"s_mov_b32 {sLB}, {LB0 + LBSTR}")
        A.vm, A.lg = [], []
        A("s_branch L_layer")
        self.final_store()
        A("L_finish:")
        self.ts_store()
        A("L_exit:")
        A("s_endpgm")
        head = open("cdna_kernels/%s.s.ref" % NAME).read().split("; Override launch")[0]
        return (head + "; Persistent fused kernel: 256 workgroups (one per CU), 4 waves x 512 registers.\n"
                "; @launch grid=(256,1,1) block=(256,1,1) lds=163840\n"
                '.amdgcn_target "amdgcn-amd-amdhsa--gfx950"\n.text\n'
                f".globl {NAME}_kernel\n.p2align 8\n.type {NAME}_kernel,@function\n{NAME}_kernel:\n"
                + A.text() +
                '.section .rodata,"a"\n.p2align 6\n'
                f".amdhsa_kernel {NAME}_kernel\n"
                "  .amdhsa_next_free_vgpr 512\n  .amdhsa_next_free_sgpr 102\n  .amdhsa_accum_offset 256\n"
                "  .amdhsa_group_segment_fixed_size 0\n  .amdhsa_kernarg_size 88\n  .amdhsa_user_sgpr_count 2\n"
                "  .amdhsa_user_sgpr_kernarg_segment_ptr 1\n  .amdhsa_system_sgpr_workgroup_id_x 1\n"
                ".end_amdhsa_kernel\n")


if __name__ == "__main__":
    import argparse, json
    ap = argparse.ArgumentParser()
    ap.add_argument("-o", default="k.s")
    ap.add_argument("--stop", default=None)
    ap.add_argument("--prof", type=int, default=0)
    ap.add_argument("--fb", action="store_true")
    ap.add_argument("--opt", default="")
    a = ap.parse_args()
    stop = None
    if a.stop:
        n, l = a.stop.split(":")
        stop = (n, int(l))
    opt = {kv.split("=")[0]: int(kv.split("=")[1]) for kv in a.opt.split(",") if kv}
    g = Gen(stop, a.prof, a.fb, opt)
    open(a.o, "w").write(g.build())
    json.dump(g.tsnames, open(a.o + ".ts.json", "w"))
    print("nops inserted:", g.A.nnop, "lines:", len(g.A.out))
```

```python
import sys, math, struct
from asmlib import Asm, interleave

NAME = "interleave_layers__softmax_full_mha__mixer_s_mlp__prompt"


def f2u(x):
    return struct.unpack("<I", struct.pack("<f", x))[0]


def fx(x):
    return "0x%08x" % f2u(x)


def flat(G):
    out = []
    for g in G:
        out += g if isinstance(g, list) else [g]
    return out


def flat1(G):
    return [x for g in G for x in g]


TS_OFF = 0x20000
CS_OFF = 0xC0000
LB0, LBSTR = 0x140000, 0x2000000
Q_OFF, KV_OFF, O_OFF = 0x0, 0x200000, 0x600000
XM_OFF, H_OFF, X1_OFF, XO_OFF, G_OFF = 0x800000, 0xA00000, 0xC00000, 0xE00000, 0x1000000
SM_OFF, S1_OFF, SO_OFF, QN_OFF, KN_OFF = 0x1800000, 0x1840000, 0x1880000, 0x18C0000, 0x18C4000
PK_OFF = 0x4140000
WS_SIZE = 0x4300000
OOB = 0x40000000
KBOUND = 230.0
QBOUND = 64.0 * 64.0 / KBOUND * 0.98
LA, LBB, LC, LEND = 0, 57344, 114688, 163840
QKVW = LBB
SECPOS = {1: 0, 0: 28672, 2: 57344}
QSCR = LC + 28672
W3SCR = LEND - 2048
W1SCR = LEND - 1024

sX, sWQ, sWO, sW1, sW2, sW3, sW4, sOUT, sDBG, sWS = [f"s[{4*i}:{4*i+3}]" for i in range(1, 11)]
sW, sXCD, sSLOT, sLAYER, sLB = "s44", "s45", "s46", "s47", "s48"
sQTB, sQH, sAH, sAQB, sTB64, sFT, sT128, sF3 = "s49", "s50", "s51", "s52", "s53", "s54", "s55", "s56"
sACT, sKH, sNI, sTB32, sCSW = "s57", "s58", "s59", "s60", "s61"
sG4 = "s62"
sMB, sN3 = "s71", "s89"
sM3 = "s[0:1]"
sFL = [f"s{64+i}" for i in range(7)]
sT = [f"s{72+i}" for i in range(8)]
sEX = "s[80:81]"
sHI = "s[82:83]"
sPADM = "s[84:85]"
sPM = "s[86:87]"
sONES = "s88"
sC = [f"s{90+i}" for i in range(6)] + ["s3"]
sVOTE = "s[86:87]"
sTSV = "s[96:97]"
vL, vL16, vL4, vTR, vTQ, vDM, vM, vR1 = "v1", "v2", "v3", "v4", "v5", "v6", "v8", "v9"
vTS = "v7"
vL1K, vONE, vS3 = "v0", "a238", "v250"
vT = [f"v{10+i}" for i in range(6)]
aRES = 240
MF = "v_mfma_f32_32x32x16_bf16"


def vr(b, n=4):
    return f"v[{b}:{b+n-1}]"


def ar(b, n=4):
    return f"a[{b}:{b+n-1}]"


def pk(op, d, *srcs, neg=None):
    ops, hi = [], []
    for s in srcs:
        if isinstance(s, tuple):
            assert s[1] % 2 == 0
            ops.append(vr(s[1], 2))
            hi.append(0)
        else:
            assert s % 2 == 0
            ops.append(vr(s, 2))
            hi.append(1)
    t = f"v_pk_{op}_f32 {vr(d,2)}, " + ", ".join(ops)
    if 0 in hi:
        t += " op_sel_hi:[" + ",".join(map(str, hi)) + "]"
    if neg:
        n = "[" + ",".join(map(str, neg)) + "]"
        t += f" neg_lo:{n} neg_hi:{n}"
    return t


class Gen:
    def __init__(self, stop=None, prof=0, force_fallback=False, opt=None):
        self.A = Asm()
        self.stop = stop
        self.prof = prof
        self.force_fallback = force_fallback
        self.uid = 0
        self.nts = 0
        self.tsnames = []
        self.opt = opt or {}

    def lab(self, s):
        self.uid += 1
        return f"L_{s}_{self.uid}"

    def ts(self, name):
        if not self.prof:
            return
        A = self.A
        i = self.nts
        self.nts += 1
        if i >= 64: return
        self.tsnames.append(name)
        A(f"{'s_memtime' if self.prof == 2 else 's_memrealtime'} {sTSV}")
        A("s_waitcnt lgkmcnt(0)")
        A(f"v_writelane_b32 {vTS}, s96, {i}")

    def ts_store(self):
        if not self.prof:
            return
        A = self.A
        A.settle()
        A(f"s_lshl_b32 {sT[0]}, s2, 2")
        A(f"s_add_u32 {sT[0]}, {sT[0]}, {sW}")
        A(f"s_lshl_b32 {sT[0]}, {sT[0]}, 1")
        A(f"s_add_u32 {sT[0]}, {sT[0]}, {sLAYER}")
        A(f"s_lshl_b32 {sT[0]}, {sT[0]}, 8")
        A(f"s_add_u32 {sT[0]}, {sT[0]}, {TS_OFF}")
        A(f"buffer_store_dword {vTS}, {vL4}, {sWS}, {sT[0]} offen")

    def phase_end(self, name):
        if self.stop and self.stop[0] == name:
            A = self.A
            A("s_waitcnt vmcnt(0) lgkmcnt(0)")
            A.settle()
            A(f"s_cmp_eq_u32 {sLAYER}, {self.stop[1]}")
            A("s_cbranch_scc1 L_finish")

    def signal(self, t, after=None):
        A = self.A
        if after:
            A.lines(flat(after))
            A.wait_tag("st")
            A("s_waitcnt lgkmcnt(0)")
        else:
            A("s_waitcnt vmcnt(0) lgkmcnt(0)")
        keep = list(A.vm)
        A("s_barrier")
        l = self.lab("sig")
        A(f"s_cmp_lg_u32 {sW}, 0")
        A(f"s_cbranch_scc1 {l}")
        if t == 3:
            A(f"s_mov_b64 exec, {sM3}")
        elif t in (2, 5):
            n = 7 if t == 2 else 14
            A(f"s_mov_b32 s87, 0")
            A(f"s_mov_b32 s86, {hex((1 << n) - 1)}")
            A(f"s_cmp_eq_u32 {sSLOT}, 0")
            A(f"s_cselect_b32 s86, {hex((1 << n) - 1 | 0xf0000000)}, s86")
            A(f"s_mov_b64 exec, {sPM}")
        else:
            A(f"s_mov_b64 exec, {hex((1 << (16 if t in (0, 6) else 14)) - 1)}")
        A(f"buffer_atomic_add {vONE}, {vS3 if t == 3 else vL1K}, {sWS}, {sFL[t]} offen sc1")
        A("s_mov_b64 exec, -1")
        A.vm = keep
        A(f"{l}:")

    def poll_loop(self, load, want, mask, low16=False):
        A = self.A
        l = self.lab("pl")
        A(f"s_mov_b64 exec, {mask}")
        A(f"s_mov_b32 {sT[1]}, 0")
        A.settle()
        A(f"{l}_loop:")
        A(load)
        A(f"s_add_u32 {sT[1]}, {sT[1]}, 1")
        A(f"s_cmp_gt_u32 {sT[1]}, 0x40000")
        A(f"s_cbranch_scc1 {l}_out")
        A("s_waitcnt vmcnt(0)")
        if low16:
            A(f"v_and_b32 {vT[0]}, 0xffff, {vT[1]}")
        A(f"v_cmp_gt_u32 vcc, {want}, {vT[0] if low16 else vT[1]}")
        A(f"s_cbranch_vccnz {l}_loop")
        A(f"{l}_out:")
        A("s_waitcnt vmcnt(0)")
        if low16:
            A(f"v_mov_b32 {vT[0]}, {LA}")
            A(f"ds_write_b32 {vT[0]}, {vT[1]}")
            A("s_waitcnt lgkmcnt(0)")
        A("s_mov_b64 exec, -1")

    def poll(self, t, n, bias=1):
        A = self.A
        l = self.lab("poll")
        A("s_waitcnt vmcnt(0) lgkmcnt(0)")
        A.settle()
        A(f"s_cmp_lg_u32 {sW}, 0")
        A(f"s_cbranch_scc1 {l}_done")
        A(f"s_add_u32 {sT[0]}, {sLAYER}, {bias}")
        A(f"s_mul_i32 {sT[0]}, {sT[0]}, {n}")
        self.poll_loop(f"buffer_load_dword {vT[1]}, {vL1K}, {sWS}, {sMB} offen offset:{4*t} sc1", sT[0], 1, low16=(t == 0))
        A(f"{l}_done:")
        A("s_barrier")

    def dma_tile64(self, srd, stride, col_lines, lds_base, vdm):
        L = list(col_lines)
        L += [f"s_mul_i32 {sT[4]}, {sW}, {14*8*stride}", f"s_add_u32 {sT[3]}, {sT[3]}, {sT[4]}",
              f"s_mul_i32 {sT[4]}, {sW}, {14*1024}", f"s_add_u32 m0, {sT[4]}, {lds_base}"]
        G = []
        for i in range(14):
            if i:
                L = [f"s_add_u32 {sT[3]}, {sT[3]}, {8*stride}", "s_add_u32 m0, m0, 1024"]
            G.append(L + [f"buffer_load_dwordx4 {vdm}, {srd}, {sT[3]} offen lds @dma"])
        return G

    def dm_lane(self, dst, stride):
        t = vT[5]
        return [f"v_lshrrev_b32 {dst}, 5, {vL}", f"v_lshlrev_b32 {dst}, 2, {dst}",
                f"v_bfe_u32 {t}, {vL}, 2, 2", f"v_add_u32 {dst}, {dst}, {t}",
                f"v_mul_u32_u24 {dst}, {stride}, {dst}",
                f"v_bfe_u32 {t}, {vL}, 4, 1", f"v_lshlrev_b32 {t}, 6, {t}", f"v_add_u32 {dst}, {dst}, {t}",
                f"v_and_b32 {t}, 3, {vL}", f"v_lshlrev_b32 {t}, 4, {t}", f"v_add_u32 {dst}, {dst}, {t}"]

    def dma_qkvw_raw(self):
        t, d = vT[5], "v252"
        L = [f"v_lshrrev_b32 {d}, 2, {vL}", f"v_mul_u32_u24 {d}, 2688, {d}",
             f"v_and_b32 {t}, 3, {vL}", f"v_lshlrev_b32 {t}, 4, {t}", f"v_add_u32 {d}, {d}, {t}",
             f"s_mul_i32 s100, {sQH}, 56", f"s_lshr_b32 {sT[4]}, {sW}, 1", f"s_and_b32 {sT[5]}, {sW}, 1",
             f"s_mul_i32 s98, {sT[4]}, 43008", f"s_mul_i32 s99, {sT[5]}, 896", "s_add_u32 s98, s98, s99",
             "s_add_u32 s98, s98, s100", "s_add_u32 s98, s98, 896",
             f"s_lshl_b32 s99, {sT[4]}, 10", f"s_mul_i32 {sT[5]}, {sT[5]}, 57344", f"s_add_u32 s99, s99, {sT[5]}",
             f"s_add_u32 s99, s99, {QKVW}",
             f"s_mul_i32 {sT[4]}, {sW}, 43008", f"s_add_u32 s100, s100, {sT[4]}",
             f"s_lshl_b32 s101, {sW}, 10", f"s_add_u32 s101, s101, {QKVW + 28672}"]
        KV, Q = [], []
        for i in range(14):
            KV.append(L + ["s_mov_b32 m0, s99", "s_add_u32 s99, s99, 2048",
                           f"buffer_load_dwordx4 {d}, {sWQ}, s98 offen lds @wkv", "s_add_u32 s98, s98, 86016"])
            L = []
        for i in range(7):
            Q.append(["s_mov_b32 m0, s101", "s_add_u32 s101, s101, 4096",
                      f"buffer_load_dwordx4 {d}, {sWQ}, s100 offen lds @wq", "s_add_u32 s100, s100, 172032"])
        return KV, Q

    def dma_qkvw_packed(self):
        L = [f"s_mul_i32 {sT[3]}, {sQH}, 86016", f"s_mul_i32 {sT[4]}, {sW}, 21504", f"s_add_u32 {sT[3]}, {sT[3]}, {sT[4]}",
             f"s_add_u32 {sT[3]}, {sT[3]}, {PK_OFF}", f"s_add_u32 m0, {sT[4]}, {QKVW}"]
        G = []
        for i in range(21):
            if i and i % 4 == 0:
                L = [f"s_add_u32 {sT[3]}, {sT[3]}, 4096", "s_add_u32 m0, m0, 4096"]
            G.append(L + [f"buffer_load_dwordx4 {vL16}, {sWS}, {sT[3]} offen offset:{(i%4)*1024} sc1 lds @wq"])
            L = []
        G.append(self.cs_restore(0, QSCR, 24))
        return G

    def cs_restore(self, off, lds, nlanes):
        return [f"s_add_u32 {sT[4]}, {sCSW}, {off}", f"s_mov_b32 m0, {lds}", f"s_mov_b64 exec, {hex((1 << nlanes) - 1)}",
                f"buffer_load_dwordx4 {vL16}, {sWS}, {sT[4]} offen sc1 lds @cs", "s_mov_b64 exec, -1"]

    def cs_save(self, acc, tile_sgpr, lds, off):
        L = [f"s_lshl_b32 {sT[0]}, {tile_sgpr}, 7",
             f"v_lshrrev_b32 {vT[0]}, 5, {vL}", f"v_lshlrev_b32 {vT[0]}, 4, {vT[0]}",
             f"v_add_u32 {vT[0]}, {sT[0]}, {vT[0]}", f"v_add_u32 {vT[1]}, {lds}, {vT[0]}",
             f"s_add_u32 {sT[0]}, {sCSW}, {off}",
             "s_mov_b32 s80, 1", "s_mov_b32 s81, 1", f"s_mov_b64 exec, {sEX}"]
        for i in range(4):
            L.append(f"ds_write_b128 {vT[1]}, {vr(acc+4*i)} offset:{32*i}")
        for i in range(4):
            L.append(f"buffer_store_dwordx4 {vr(acc+4*i)}, {vT[0]}, {sWS}, {sT[0]} offen offset:{32*i} sc1")
        L.append("s_mov_b64 exec, -1")
        return L

    def frag_loads(self, regs, base_lines, n, vaddr=vL16, s=None):
        s = s or sT[2]
        G = []
        L = list(base_lines)
        for i in range(n):
            if i and i % 4 == 0:
                L.append(f"s_add_u32 {s}, {s}, 4096")
            va = vaddr(i) if callable(vaddr) else vaddr
            L.append(f"buffer_load_dwordx4 {regs(i)}, {va}, {sWS}, {s} offen offset:{(i%4)*1024} sc1")
            G.append(L)
            L = []
        return G

    def stats_loads(self, off, tb, dst):
        G = []
        L = [f"s_mul_i32 {sT[5]}, {tb}, 3584", f"s_add_u32 {sT[5]}, {sT[5]}, {off}",
             f"v_lshrrev_b32 v{dst+14}, 5, {vL}", f"v_mul_u32_u24 v{dst+14}, {1792-256}, v{dst+14}",
             f"v_lshl_add_u32 v{dst+14}, {vL}, 3, v{dst+14}"]
        for i in range(7):
            G.append(L + [f"buffer_load_dwordx2 {vr(dst+2*i,2)}, v{dst+14}, {sWS}, {sT[5]} offen offset:{i*256} sc1"])
            L = []
        return G

    def stats_sum(self, src, s1, s2):
        L = []
        for a, b in ((0, 1), (2, 3), (4, 5), (0, 2), (4, 6), (0, 4)):
            for c in range(2):
                L.append(f"v_add_f32 v{src+2*a+c}, v{src+2*a+c}, v{src+2*b+c}")
        L += [f"v_mov_b32 {s1}, v{src}", f"v_mov_b32 {s2}, v{src+1}",
              f"v_permlane32_swap_b32 {s1}, v{src}", f"v_permlane32_swap_b32 {s2}, v{src+1}",
              f"v_add_f32 {s1}, {s1}, v{src}", f"v_add_f32 {s2}, {s2}, v{src+1}"]
        return L

    def stats_fin(self, s1, s2, m, var):
        return [f"v_mul_f32 {m}, {sC[0]}, {s1}", f"v_mul_f32 {var}, {sC[0]}, {s2}",
                f"v_fma_f32 {var}, -{m}, {m}, {var}", f"v_max_f32 {var}, 0, {var}"]

    def stats_out(self, val, off, tmp):
        a, b = tmp, tmp + 2
        L = [pk("add", a, val, val + 2), pk("mul", b, val, val)]
        for i in range(2, 16, 2):
            L.append(pk("fma", b, val + i, val + i, b))
            if i >= 4:
                L.append(pk("add", a, a, val + i))
        L += [f"v_add_f32 v{a}, v{a}, v{a+1}", f"v_add_f32 v{a+1}, v{b}, v{b+1}",
              f"s_mul_i32 {sT[5]}, {sTB32}, 3584", f"v_mov_b32 v{b}, v{a}", f"v_mov_b32 v{b+1}, v{a+1}",
              f"s_lshl_b32 {sT[6]}, {sFT}, 9", f"s_add_u32 {sT[5]}, {sT[5]}, {sT[6]}",
              f"v_permlane32_swap_b32 v{a}, v{b}", f"v_permlane32_swap_b32 v{a+1}, v{b+1}",
              f"s_lshl_b32 {sT[6]}, {sKH}, 8", f"s_add_u32 {sT[5]}, {sT[5]}, {sT[6]}",
              pk("add", a, a, b), f"v_lshlrev_b32 v{b}, 3, {vL}",
              f"s_add_u32 {sT[5]}, {sT[5]}, {sLB}", f"s_add_u32 {sT[5]}, {sT[5]}, {off}",
              "s_mov_b64 exec, 0xffffffff", f"buffer_store_dwordx2 {vr(a,2)}, v{b}, {sWS}, {sT[5]} offen sc1 @st",
              "s_mov_b64 exec, -1"]
        return L

    def pack_store(self, val, tmp, soff, off0=0, fix=None):
        L = []
        for d in range(8):
            L.append(f"v_cvt_pk_bf16_f32 v{tmp+d}, v{val+2*d}, v{val+2*d+1}")
            if fix:
                L += fix(d, tmp + d)
            if d == 3:
                L.append(f"buffer_store_dwordx4 {vr(tmp)}, {vL16}, {sWS}, {soff} offen offset:{off0} sc1 @st")
        L.append(f"buffer_store_dwordx4 {vr(tmp+4)}, {vL16}, {sWS}, {soff} offen offset:{off0+1024} sc1 @st")
        return L

    def tile_off(self, off, s):
        return [f"s_mul_i32 {s}, {sTB32}, 28672", f"s_lshl_b32 {sT[6]}, {sFT}, 12", f"s_add_u32 {s}, {s}, {sT[6]}",
                f"s_lshl_b32 {sT[6]}, {sKH}, 11", f"s_add_u32 {s}, {s}, {sT[6]}",
                f"s_add_u32 {s}, {s}, {sLB}", f"s_add_u32 {s}, {s}, {off}"]

    def tr(self, dst, vaddr, off, second, vaddr2=None):
        kind, b = dst
        r = vr if kind == "v" else ar
        return [f"ds_read_b64_tr_b16 {r(b,2)}, {vaddr} offset:{off}",
                f"ds_read_b64_tr_b16 {r(b+2,2)}, {vaddr2 or vaddr} offset:{off+second}"]

    def colsum(self, vaddr, off_of, second, acc, stage, ones):
        L = [f"v_mov_b32 v{ones+i}, {sONES}" for i in range(4)]
        D = 5
        for ks in range(D):
            L += self.tr(("v", stage + 4 * (ks % 6)), vaddr, off_of(ks), second)
        for ks in range(28):
            L.append(f"{MF} {vr(acc,16)}, {vr(stage+4*(ks%6))}, {vr(ones)}, {vr(acc,16) if ks else '0'}")
            if ks + D < 28:
                L += self.tr(("v", stage + 4 * ((ks + D) % 6)), vaddr, off_of(ks + D), second)
        return L

    def gelu_pre(self, acc, cs, w, m, ka, kb):
        L = []
        for g in range(0, 16, 8):
            r = range(g, g + 8, 2)
            L += [pk("fma", acc + i, ("b", m), cs + i, acc + i, neg=[1, 0, 0]) for i in r]
            L += [pk("mul", w + i, acc + i, acc + i) for i in r]
            L += [pk("fma", w + i, w + i, ("b", kb), ("b", ka)) for i in r]
            L += [pk("mul", w + i, w + i, acc + i) for i in r]
        return L

    def gelu_post(self, acc, w, iR, packed):
        L = []
        for g in range(0, 16, 4):
            r = range(g, g + 4)
            L += [f"v_exp_f32 v{w+i}, v{w+i}" for i in r]
            if packed:
                L += [pk("fma", w + i, w + i, ("b", iR), ("b", iR)) for i in (g, g + 2)]
            else:
                L += [f"v_fma_f32 v{w+i}, v{w+i}, v{iR}, v{iR}" for i in r]
            L += [f"v_rcp_f32 v{w+i}, v{w+i}" for i in r]
            if packed:
                L += [pk("mul", acc + i, acc + i, w + i) for i in (g, g + 2)]
            else:
                L += [f"v_mul_f32 v{acc+i}, v{acc+i}, v{w+i}" for i in r]
        return L

    def gelu_consts(self, R, ka, kb, iR):
        return [f"v_mul_f32 v{ka}, {sC[2]}, {R}", f"v_mul_f32 v{kb}, {R}, {R}", f"v_mul_f32 v{kb}, v{kb}, {R}",
                f"v_mul_f32 v{kb}, {sC[3]}, v{kb}", f"v_rcp_f32 v{iR}, {R}"]

    def touch(self, srd, idx_sgpr_lines, lines_per_wave, dst, base=0):
        n = (lines_per_wave + 63) // 64
        L = list(idx_sgpr_lines) + [f"s_mul_i32 {sT[3]}, {sT[3]}, {lines_per_wave*128}"]
        if base:
            L.append(f"s_add_u32 {sT[3]}, {sT[3]}, {base}")
        L.append(f"v_lshlrev_b32 {vT[5]}, 7, {vL}")
        G = []
        for i in range(n):
            if i:
                L = [f"s_add_u32 {sT[3]}, {sT[3]}, 8192"]
            G.append(L + [f"buffer_load_dword v{dst}, {vT[5]}, {srd}, {sT[3]} offen"])
        return G

    def warm(self, srd, idx_sgpr_lines, n, per_wave_bytes, dst, base=0):
        L = list(idx_sgpr_lines) + [f"s_mul_i32 {sT[3]}, {sT[3]}, {per_wave_bytes}"]
        if base:
            L.append(f"s_add_u32 {sT[3]}, {sT[3]}, {base}")
        G = []
        for i in range(n):
            if i and i % 4 == 0:
                L = [f"s_add_u32 {sT[3]}, {sT[3]}, 4096"]
            G.append(L + [f"buffer_load_dwordx4 {vr(dst)}, {vL16}, {srd}, {sT[3]} offen offset:{(i%4)*1024} @nodst"])
            L = []
        return G

    def prologue(self):
        A = self.A
        A("s_cmp_ge_u32 s2, 256")
        A("s_cbranch_scc1 L_exit")
        A("s_load_dwordx16 s[48:63], s[0:1], 0")
        A("s_load_dwordx4 s[64:67], s[0:1], 64")
        A("s_load_dwordx2 s[68:69], s[0:1], 80")
        A(f"v_and_b32 {vL}, 63, v0")
        A(f"v_lshrrev_b32 {vT[0]}, 6, v0")
        A(f"v_lshlrev_b32 {vL16}, 4, {vL}")
        A(f"v_readfirstlane_b32 {sW}, {vT[0]}")
        A(f"v_lshlrev_b32 {vL4}, 2, {vL}")
        A(f"v_mov_b32 {vTS}, 0")
        t = vT[0]
        A(f"v_bfe_u32 {vTQ}, {vL}, 2, 2")
        A(f"v_lshlrev_b32 {vTQ}, 6, {vTQ}")
        A(f"v_bfe_u32 {t}, {vL}, 4, 1")
        A(f"v_lshlrev_b32 {t}, 5, {t}")
        A(f"v_add_u32 {vTQ}, {vTQ}, {t}")
        A(f"v_and_b32 {t}, 3, {vL}")
        A(f"v_lshlrev_b32 {t}, 3, {t}")
        A(f"v_add_u32 {vTQ}, {vTQ}, {t}")
        A(f"v_lshrrev_b32 {t}, 5, {vL}")
        A(f"v_lshlrev_b32 {t}, 9, {t}")
        A(f"v_add_u32 {vTR}, {vTQ}, {t}")
        A.lines(self.dm_lane(vDM, 896))
        A(f"s_and_b32 {sXCD}, s2, 7")
        A(f"s_lshr_b32 {sSLOT}, s2, 3")
        A(f"s_mov_b32 {sLAYER}, 0")
        A("s_mov_b32 s82, 0")
        A("s_mov_b32 s83, -1")
        A("s_mov_b32 s84, 0xf0000000")
        A("s_mov_b32 s85, 0xf0000000")
        A(f"s_mov_b32 {sONES}, 0x3f803f80")
        k0 = -2.0 * math.log2(math.e) * math.sqrt(2.0 / math.pi)
        for i, c in enumerate([1.0 / 448, 1e-5, k0, k0 * 0.044715, 28 ** -0.5 * math.log2(math.e), KBOUND, QBOUND]):
            A(f"s_mov_b32 {sC[i]}, {fx(c)}")
        A("s_waitcnt lgkmcnt(0)")
        srcs = [(48, 2048 * 896), (50, 448 * 2688), (52, 448 * 896), (56, 448 * 896), (58, 448 * 896),
                (60, 448 * 3584), (62, 1792 * 896), (64, 2048 * 896), (66, 256), (68, WS_SIZE)]
        for i, (p, n) in enumerate(srcs):
            b = 4 + 4 * i
            A(f"s_mov_b32 s{b}, s{p}")
            A(f"s_mov_b32 s{b+1}, s{p+1}")
            A(f"s_mov_b32 s{b+2}, {n}")
            A(f"s_mov_b32 s{b+3}, 0x20000")
        A(f"s_mov_b32 {sLB}, {LB0}")
        self.ts("start")
        A(f"s_lshr_b32 {sT[0]}, {sSLOT}, 4")
        A(f"s_lshl_b32 {sT[1]}, {sXCD}, 1")
        A(f"s_add_u32 {sAH}, {sT[0]}, {sT[1]}")
        A(f"s_and_b32 {sQH}, {sSLOT}, 15")
        A(f"s_mov_b32 {sAQB}, {sQH}")
        A(f"s_lshl_b32 {sQTB}, {sAH}, 2")
        A(f"s_add_u32 {sQTB}, {sQTB}, {sW}")

    def prologue2(self):
        A = self.A
        A(f"s_cmp_lt_u32 {sSLOT}, 28")
        A(f"s_cselect_b32 {sACT}, 1, 0")
        A(f"s_mul_i32 {sT[0]}, {sSLOT}, 37")
        A(f"s_lshr_b32 {sT[0]}, {sT[0]}, 8")
        A(f"s_mul_i32 {sT[1]}, {sT[0]}, 7")
        A(f"s_sub_u32 {sFT}, {sSLOT}, {sT[1]}")
        A(f"s_lshl_b32 {sT[1]}, {sXCD}, 2")
        A(f"s_add_u32 {sTB64}, {sT[0]}, {sT[1]}")
        A(f"s_lshr_b32 {sT[0]}, {sT[0]}, 1")
        A(f"s_mul_i32 {sT[1]}, {sT[0]}, 14")
        A(f"s_sub_u32 {sF3}, {sSLOT}, {sT[1]}")
        A(f"s_lshl_b32 {sT[1]}, {sXCD}, 1")
        A(f"s_add_u32 {sT128}, {sT[0]}, {sT[1]}")
        A(f"s_lshr_b32 {sKH}, {sW}, 1")
        A(f"s_and_b32 {sNI}, {sW}, 1")
        A(f"s_lshl_b32 {sTB32}, {sTB64}, 1")
        A(f"s_add_u32 {sTB32}, {sTB32}, {sNI}")
        A(f"s_lshl_b32 {sCSW}, s2, 11")
        A(f"s_add_u32 {sCSW}, {sCSW}, {CS_OFF}")
        A(f"s_lshl_b32 {sMB}, s2, 7")
        def fl(t, x, n):
            A(f"s_and_b32 {sT[0]}, {x}, 1")
            A(f"s_mul_i32 {sT[0]}, {sT[0]}, {n*1024}")
            A(f"s_lshr_b32 {sT[1]}, {x}, 1")
            A(f"s_lshl_b32 {sT[1]}, {sT[1]}, 7")
            A(f"s_add_u32 {sT[0]}, {sT[0]}, {sT[1]}")
            A(f"s_add_u32 {sFL[t]}, {sT[0]}, {4*t}")
        fl(0, sQH, 16)
        fl(1, sAQB, 14)
        fl(4, sT128, 14)
        fl(5, sT128, 14)
        fl(6, sT128, 16)
        A(f"s_sub_u32 {sT[0]}, {sSLOT}, {sFT}")
        A(f"s_lshl_b32 {sT[0]}, {sT[0]}, 10")
        A(f"s_lshl_b32 {sT[1]}, {sXCD}, 7")
        A(f"s_add_u32 {sT[0]}, {sT[0]}, {sT[1]}")
        A(f"s_add_u32 {sFL[2]}, {sT[0]}, 8")
        A(f"s_mov_b32 {sFL[3]}, 12")
        A("s_mov_b32 s0, 0x7f7f7f")
        A("s_mov_b32 s1, 0")
        A(f"s_mov_b32 {sN3}, 21")
        A(f"s_cmp_eq_u32 {sTB64}, 0")
        A("s_cselect_b32 s0, 0x7f7f00, s0")
        A(f"s_cselect_b32 {sN3}, 14, {sN3}")
        A(f"s_cmp_eq_u32 {sTB64}, 31")
        A("s_cselect_b32 s0, 0x7f7f, s0")
        A(f"s_cselect_b32 {sN3}, 14, {sN3}")
        A(f"v_lshlrev_b32 {vL1K}, 10, {vL}")
        A(f"v_accvgpr_write_b32 {vONE}, 1")

    def flag_init(self, step):
        A = self.A
        keep = list(A.vm)
        l = self.lab("init")
        A(f"s_cmp_lg_u32 {sW}, 3")
        A(f"s_cbranch_scc1 {l}")
        if step == 0:
            A(f"v_mov_b32 {vT[0]}, 0")
            A(f"s_lshl_b32 {sT[0]}, s2, 7")
            A("s_mov_b64 exec, 0xffffffff")
            A(f"buffer_store_dword {vT[0]}, {vL4}, {sWS}, {sT[0]} offen sc1")
        else:
            A(f"s_and_b32 {sT[0]}, s2, 63")
            A(f"s_lshl_b32 {sT[0]}, {sT[0]}, 2")
            A("s_mov_b64 exec, 1")
            A(f"buffer_atomic_add {vONE}, {vL4}, {sDBG}, {sT[0]} offen sc1")
        A("s_mov_b64 exec, -1")
        A.settle()
        A.vm = keep
        A(f"{l}:")

    def qkv_addr(self, layer0):
        A = self.A
        a1, a2, b1, b2 = vT[0], vT[1], vT[2], vT[3]
        A(f"v_lshrrev_b32 {a1}, 5, {vL}")
        A(f"v_lshlrev_b32 {a1}, {9 if layer0 else 8}, {a1}")
        A(f"s_mov_b32 {sT[0]}, {QKVW}")
        A(f"v_add3_u32 {a1}, {a1}, {vTQ}, {sT[0]}")
        A(f"v_add_u32 {a2}, {256 if layer0 else 512}, {a1}")
        A(f"v_add_u32 {b1}, 57344, {a1}")
        A(f"v_add_u32 {b2}, 57344, {a2}")

    def q_rd(self, i):
        a1, a2, b1, b2 = vT[0], vT[1], vT[2], vT[3]
        st = ("v", 176 + 4 * (i % 6))
        if i < 56:
            ks, p = divmod(i, 2)
            return self.tr(st, b1, ks * 1024, 0, b2) if p else self.tr(st, a1, ks * 1024, 0, a2)
        return self.tr(st, a1, 28672 + (i - 56) * 1024, 0, a2)

    def q_mm(self, i):
        w = vr(176 + 4 * (i % 6))
        if i < 56:
            ks, p = divmod(i, 2)
            x = vr(16 + 4 * ks)
            acc = vr(160 if p else 128, 16)
            a, b = (x, w) if p else (w, x)
        else:
            ks = i - 56
            a, b, acc = w, vr(16 + 4 * ks), vr(144, 16)
        return f"{MF} {acc}, {a}, {b}, {acc if ks else '0'}"

    QD = 5

    def qkv_p1(self, loads=None):
        A = self.A
        for i in range(self.QD):
            A.lines(self.q_rd(i))
        loads = list(loads or [])
        for i in range(56):
            A(self.q_mm(i))
            if loads:
                A.lines(loads.pop(0))
            A.lines(self.q_rd(i + self.QD))

    def dots(self, k0, k1):
        L = []
        for r in range(16 + 4 * k0, 16 + 4 * k1):
            L.append(f"v_dot2_f32_bf16 v{200 + 2*(r&1)}, v{r}, {sONES}, v{200 + 2*(r&1)}")
            L.append(f"v_dot2_f32_bf16 v{201 + 2*(r&1)}, v{r}, v{r}, v{201 + 2*(r&1)}")
        return L

    def xnorm(self):
        L = [pk("add", 200, 200, 202)]
        for r in (200, 201):
            L += [f"v_mov_b32 v202, v{r}", f"v_permlane32_swap_b32 v202, v{r}", f"v_add_f32 v{r}, v{r}, v202"]
        L += self.stats_fin("v200", "v201", "v202", "v203")
        L += [f"v_add_f32 v203, {sC[1]}, v203", "v_rsq_f32 v204, v203", "v_mul_f32 v202, v202, v204",
              "v_mov_b32 v200, 0", f"v_mov_b32 v201, {fx(448 * (1 - 1e-5))}"]
        for g in range(16, 128, 4):
            for j in range(4):
                L += [f"v_lshlrev_b32 v{208+2*j}, 16, v{g+j}", f"v_and_b32 v{209+2*j}, 0xffff0000, v{g+j}"]
            L += [pk("fma", 208 + 2 * j, 208 + 2 * j, ("b", 204), ("b", 202), neg=[0, 0, 1]) for j in range(4)]
            L += [f"v_cvt_pk_bf16_f32 v{g+j}, v{208+2*j}, v{209+2*j}" for j in range(4)]
        return L

    def xbase(self, dst):
        return [f"s_mul_i32 {dst}, {sW}, 28672", f"s_cmp_eq_u32 {sW}, 2", f"s_cselect_b32 {dst}, {QKVW + 28672}, {dst}",
                f"s_cmp_eq_u32 {sW}, 3", f"s_cselect_b32 {dst}, {LEND - 28672}, {dst}"]

    def xdma(self):
        d, t = "v253", vT[5]
        L = [f"v_lshrrev_b32 {d}, 2, {vL}", f"v_mul_u32_u24 {d}, 896, {d}",
             f"v_lshrrev_b32 {t}, 4, {vL}", f"v_xor_b32 {t}, {t}, {vL}", f"v_and_b32 {t}, 3, {t}",
             f"v_lshlrev_b32 {t}, 4, {t}", f"v_add_u32 {d}, {d}, {t}"]
        L += [f"s_mul_i32 {sT[2]}, {sQTB}, {32*896}"] + self.xbase(sT[6]) + [f"s_mov_b32 m0, {sT[6]}"]
        for q in range(28):
            seg, rh = q >> 1, q & 1
            L += [f"s_add_u32 {sT[3]}, {sT[2]}, {rh*16*896 + seg*64}"]
            if q:
                L += ["s_add_u32 m0, m0, 1024"]
            L += [f"buffer_load_dwordx4 {d}, {sX}, {sT[3]} offen lds @x{q // 14}"]
        return L

    def xreads(self, rnd):
        e, o, t = "v254", "v255", vT[5]
        L = []
        if rnd == 0:
            L += [f"v_and_b32 {e}, 31, {vL}", f"v_lshlrev_b32 {e}, 6, {e}", f"v_add_u32 {e}, {sT[6]}, {e}",
                  f"v_bfe_u32 {t}, {vL}, 2, 2", f"v_lshrrev_b32 {o}, 5, {vL}", f"v_xor_b32 {t}, {t}, {o}",
                  f"v_xor_b32 {o}, 2, {t}", f"v_lshlrev_b32 {o}, 4, {o}", f"v_add_u32 {o}, {o}, {e}",
                  f"v_lshlrev_b32 {t}, 4, {t}", f"v_add_u32 {e}, {e}, {t}"]
        for ks in range(14 * rnd, 14 * rnd + 14):
            L.append(f"ds_read_b128 {vr(16+4*ks)}, {e if ks % 2 == 0 else o} offset:{(ks >> 1)*2048}")
        return L

    def page_touch(self):
        A = self.A
        keep = list(A.vm)
        l = self.lab("pt")
        A(f"s_cmp_lg_u32 {sW}, 1")
        A(f"s_cbranch_scc1 {l}")
        mode = self.opt.get("tlb", 0)
        if mode == 1:
            A(f"s_lshl_b32 {sT[0]}, {sSLOT}, 21")
            A(f"v_lshlrev_b32 v250, 26, {vL}")
            A("s_mov_b64 exec, 3")
        else:
            A(f"s_mov_b32 {sT[0]}, 0")
            A(f"v_lshlrev_b32 v250, 21, {vL}")
            A("s_mov_b64 exec, -1")
        A(f"buffer_load_dword v249, v250, {sWS}, {sT[0]} offen offset:4092 @nodst")
        A("s_mov_b64 exec, 1")
        for srd in (sWO, sW1, sW2, sW3, sW4, sOUT):
            A(f"buffer_load_dword v249, v250, {srd}, 0 offen @nodst")
        A("s_mov_b64 exec, -1")
        A.vm = keep
        A(f"{l}:")

    def code_prefetch(self):
        A = self.A
        A("s_getpc_b64 s[96:97]")
        A("L_pc:")
        A(f"s_lshl_b32 {sT[0]}, {sSLOT}, 2")
        A(f"s_add_u32 {sT[0]}, {sT[0]}, {sW}")
        A(f"s_lshl_b32 {sT[0]}, {sT[0]}, 9")
        A(f"v_lshlrev_b32 v250, 3, {vL}")
        A(f"v_add_u32 v250, {sT[0]}, v250")
        A(f"s_mov_b32 {sT[0]}, L_exit-L_pc-8")
        A(f"v_min_u32 v250, {sT[0]}, v250")
        A("global_load_dwordx2 v[248:249], v250, s[96:97] @nodst")

    def resid_load(self):
        A = self.A
        d, t = vT[0], vT[1]
        A(f"v_and_b32 {d}, 31, {vL}")
        A(f"v_mul_u32_u24 {d}, 896, {d}")
        A(f"v_lshrrev_b32 {t}, 5, {vL}")
        A(f"v_lshlrev_b32 {t}, 3, {t}")
        A(f"v_add_u32 {d}, {d}, {t}")
        A(f"s_mul_i32 {sT[2]}, {sTB32}, {32*896}")
        A(f"s_lshl_b32 {sT[3]}, {sFT}, 7")
        A(f"s_add_u32 {sT[2]}, {sT[2]}, {sT[3]}")
        A(f"s_lshl_b32 {sT[3]}, {sKH}, 6")
        A(f"s_add_u32 {sT[2]}, {sT[2]}, {sT[3]}")
        for i in range(4):
            A(f"buffer_load_dwordx2 {vr(240+2*i,2)}, {d}, {sX}, {sT[2]} offen offset:{16*i}")

    def resid_unpack(self):
        A = self.A
        for i in range(8):
            A(f"v_lshlrev_b32 {vT[0]}, 16, v{240+i}")
            A(f"v_and_b32 {vT[1]}, 0xffff0000, v{240+i}")
            A(f"v_accvgpr_write_b32 a{aRES+2*i}, {vT[0]}")
            A(f"v_accvgpr_write_b32 a{aRES+2*i+1}, {vT[1]}")

    def norm_vote(self, val, thr, n, packed):
        if packed:
            L = [pk("mul", n, val, val), pk("mul", n + 2, val + 12, val + 12)]
            L += [pk("fma", n, val + i, val + i, n) for i in range(2, 12, 2)]
            L += [pk("fma", n + 2, val + 14, val + 14, n + 2), f"v_add_f32 v{n}, v{n}, v{n+1}",
                  f"v_add_f32 v{n+2}, v{n+2}, v{n+3}"]
        else:
            L = [f"v_mul_f32 v{n}, v{val}, v{val}", f"v_mul_f32 v{n+1}, v{val+1}, v{val+1}",
                 f"v_mul_f32 v{n+2}, v{val+12}, v{val+12}"]
            L += [f"v_fmac_f32 v{n + i % 2}, v{val+i}, v{val+i}" for i in range(2, 12)]
            L += [f"v_fmac_f32 v{n+2}, v{val+i}, v{val+i}" for i in range(13, 16)]
            L += [f"v_add_f32 v{n}, v{n}, v{n+1}"]
        L += [f"v_cndmask_b32 v{n+2}, v{n+2}, 0, {sHI}", f"v_add_f32 v{n}, v{n}, v{n+2}",
              f"v_mov_b32 v{n+1}, v{n}", f"v_permlane32_swap_b32 v{n}, v{n+1}", f"v_add_f32 v{n}, v{n}, v{n+1}",
              [f"v_cmp_nge_f32 vcc, {thr}, v{n}", f"s_or_b64 {sVOTE}, {sVOTE}, vcc"]]
        return L

    def qkv_p2(self):
        A = self.A
        m, var, R, nrm, RQ, nrq, csv, padv = "v202", "v203", "v204", "v205", "v206", "v202", "v203", "v207"
        sK, sQ = sT[7], sT[1]
        vh, vt = vT[4], vT[5]
        E = [f"s_mov_b64 {sVOTE}, 0"] + self.stats_fin("v200", "v201", m, var)
        E += [f"v_add_f32 {var}, {sC[1]}, {var}", f"v_rsq_f32 {R}, {var}",
              f"s_lshl_b32 {sT[0]}, {sW}, 8", f"s_add_u32 {sT[0]}, {sT[0]}, {QSCR + 512}",
              f"v_add_u32 {vt}, {sT[0]}, {vL4}", f"v_mul_f32 {nrm}, {R}, {m}",
              f"v_mul_f32 {RQ}, {sC[4]}, {R}", f"v_cndmask_b32 v200, {R}, {nrm}, {sHI}",
              f"ds_write_b32 {vt}, v200", f"v_mul_f32 {nrq}, {RQ}, {m}",
              f"v_lshrrev_b32 {vh}, 5, {vL}", f"v_lshlrev_b32 {vh}, 4, {vh}", f"v_add_u32 {vt}, {sT[0]}, {vh}",
              f"v_add_u32 {vh}, {QSCR}, {vh}"]
        E += [f"ds_read_b128 {vr(208+4*i)}, {vh} offset:{32*i}" for i in range(4)]
        E += [f"ds_read_b128 {vr(224+16*p+4*i)}, {vt} offset:{128*p+32*i}" for p in range(2) for i in range(4)]
        E += [f"v_and_b32 v200, 31, {vL}", "v_cmp_eq_u32 vcc, 28, v200", "v_lshlrev_b32 v200, 2, v200",
              f"v_add_u32 v200, {QSCR + 256}, v200", f"ds_read_b32 {csv}, v200",
              f"v_mov_b32 {padv}, {sONES}", f"v_cndmask_b32 {padv}, 0, {padv}, vcc",
              f"s_lshl_b32 {sQ}, {sQH}, 6", f"s_add_u32 {sQ}, {sQ}, {sQTB}", f"s_lshl_b32 {sK}, {sQ}, 12",
              f"s_add_u32 {sK}, {sK}, {sLB}", f"s_add_u32 {sK}, {sK}, {KV_OFF}",
              f"s_lshl_b32 {sQ}, {sQ}, 11", f"s_add_u32 {sQ}, {sQ}, {sLB}", f"v_mov_b32 v200, {sONES}",
              "v_mov_b32 v201, 0x3f80"]
        for i in range(16):
            E += [f"v_mul_f32 v{208+i}, v{208+i}, {nrm}", f"v_fma_f32 v{128+i}, v{128+i}, {R}, -v{208+i}"]
        E += self.norm_vote(128, sC[5], 208, False)
        E += [f"ds_read_b128 {vr(208+4*i)}, {vh} offset:{128+32*i}" for i in range(4)]
        def fixk(d, r):
            return [f"v_cndmask_b32 v{r}, v{r}, v{200 + d - 6}, {sHI}"] if d >= 6 else []
        E += self.pack_store(128, 128, sK, 0, fixk)
        for i in range(16):
            E += [f"v_mul_f32 v{240+i}, v{240+i}, {csv}", f"v_fma_f32 v{160+i}, v{160+i}, v{224+i}, -v{240+i}"]
        E += self.pack_store(160, 160, sK, 2048, lambda d, r: [f"v_cndmask_b32 v{r}, v{r}, {padv}, {sPADM}"])
        main = [[self.q_mm(i)] + (self.q_rd(i + self.QD) if i + self.QD < 84 else []) for i in range(56, 84)]
        A.lines(flat(interleave(main, E, start=0, end=27)))
        self.ts("qkv_p2")
        for i in range(0, 16, 2):
            A(pk("mul", 208 + i, 208 + i, ("b", 202)))
        for i in range(0, 16, 2):
            A(pk("fma", 144 + i, 144 + i, ("b", 206), 208 + i, neg=[0, 0, 1]))
        A.lines(self.pack_store(144, 224, sQ, 0, lambda d, r: [f"v_cndmask_b32 v{r}, v{r}, 0, {sHI}"] if d >= 6 else []))
        A.lines(flat(self.norm_vote(144, sC[6], 208, True)))
        l = self.lab("vote")
        keep = list(A.vm)
        if not self.force_fallback:
            A(f"s_cmp_eq_u64 {sVOTE}, 0")
            A(f"s_cbranch_scc1 {l}")
        A("v_mov_b32 v208, 0x10000")
        A("s_mov_b64 exec, 0xffff")
        A(f"buffer_atomic_add v208, {vL1K}, {sWS}, {sFL[0]} offen sc1")
        A("s_mov_b64 exec, -1")
        A.vm = keep
        A(f"{l}:")

    def qkv_dump(self):
        A = self.A
        l = self.lab("dump")
        A(f"s_lshl_b32 {sT[2]}, {sAH}, 2")
        A(f"s_add_u32 {sT[2]}, {sT[2]}, {sW}")
        A(f"s_cmp_ge_u32 {sT[2]}, 42")
        A(f"s_cbranch_scc1 {l}")
        keep = list(A.vm)
        A(f"s_lshl_b32 {sT[2]}, {sT[2]}, 11")
        A(f"s_add_u32 {sT[3]}, {sT[2]}, {QKVW}")
        A(f"v_add_u32 v208, {sT[3]}, {vL16}")
        A("ds_read_b128 v[212:215], v208")
        A("ds_read_b128 v[216:219], v208 offset:1024")
        A(f"s_mul_i32 {sT[3]}, {sQH}, 86016")
        A(f"s_add_u32 {sT[2]}, {sT[2]}, {sT[3]}")
        A(f"s_add_u32 {sT[2]}, {sT[2]}, {PK_OFF}")
        A(f"buffer_store_dwordx4 v[212:215], {vL16}, {sWS}, {sT[2]} offen sc1")
        A(f"buffer_store_dwordx4 v[216:219], {vL16}, {sWS}, {sT[2]} offen offset:1024 sc1")
        A.settle()
        A.vm = keep
        A(f"{l}:")

    def qkv_phase(self):
        A = self.A
        A(f"s_cmp_lg_u32 {sLAYER}, 0")
        A("s_cbranch_scc1 L_qkv1")
        self.flag_init(0)
        A.lines(self.xdma())
        if self.opt.get("codepf", 1):
            self.code_prefetch()
        if self.opt.get("tlb", 0):
            self.page_touch()
        KV, Q = self.dma_qkvw_raw()
        n0 = self.opt.get("q0n", 3)
        A.lines(flat(KV[:n0]))
        self.prologue2()
        for r in range(200, 204):
            A(f"v_mov_b32 v{r}, 0")
        self.ts("q0_issued")
        A("@wait_tag x0")
        self.flag_init(1)
        A.lines(self.xreads(0))
        A("@wait_tag x1")
        A.lines(self.xreads(1))
        self.ts("q0_x")
        A.lines(flat(interleave(self.dots(0, 14), KV[n0:n0 + 3])))
        A("s_waitcnt lgkmcnt(0)")
        A("s_barrier")
        A(f"v_lshlrev_b32 {vT[0]}, 3, {vL}")
        A(f"v_add_u32 {vT[0]}, {QSCR}, {vT[0]}")
        A("v_pk_mov_b32 v[208:209], 0, 0")
        A(f"ds_write_b64 {vT[0]}, v[208:209]")
        A.lines(flat(interleave(self.dots(14, 28) + self.xnorm(), KV[n0 + 3:], end=400)))
        self.qkv_addr(True)
        A(f"buffer_load_dword v251, {vL4}, {sDBG}, 0 offen sc1")
        self.ts("q0_norm")
        A("@wait_tag wkv")
        A("s_barrier")
        self.ts("q0_wkv")
        self.qkv_p1(flat1([[g, [], [], [], [], []] for g in Q]))
        lg = list(A.lg)
        A("s_waitcnt vmcnt(0)")
        l = self.lab("chk")
        A(f"v_cmp_gt_u32 vcc, 4, v251")
        A(f"s_cbranch_vccz {l}")
        self.init_poll()
        A(f"{l}:")
        A("s_barrier")
        A.settle()
        A("s_branch L_qkv_p2")
        A("L_qkv1:")
        A.lg = []
        self.poll(6, 14, bias=0)
        self.ts("qkv_polled")
        B = self.frag_loads(lambda i: vr(16 + 4 * i),
                            [f"s_mul_i32 {sT[2]}, {sQTB}, 28672", f"s_add_u32 {sT[2]}, {sT[2]}, {LB0 + XO_OFF}"], 28)
        U = self.opt.get("qU", 12)
        A.lines(flat(B[:U]))
        self.qkv_addr(False)
        rest = []
        for g in B[U:]:
            rest += [g, []]
        S = self.stats_loads(LB0 + SO_OFF, sQTB, 224)
        self.qkv_p1(rest + S)
        A.lines(self.stats_sum(224, "v200", "v201"))
        A.wait(vm=0)
        A.settle()
        assert len(A.lg) <= len(lg)
        A.lg = lg
        A("L_qkv_p2:")
        self.ts("qkv_p1")
        self.qkv_p2()
        l = self.lab("dmp")
        A(f"s_cmp_lg_u32 {sLAYER}, 0")
        A(f"s_cbranch_scc1 {l}")
        self.qkv_dump()
        A(f"{l}:")
        self.ts("qkv_epi")
        self.signal(0)
        self.ts("qkv_sig")
        l = self.lab("res")
        A(f"s_cmp_lg_u32 {sLAYER}, 0")
        A(f"s_cbranch_scc1 {l}")
        self.resid_load()
        A(f"s_cmp_eq_u32 {sW}, 0")
        A(f"s_cbranch_scc1 {l}")
        A(f"s_sub_u32 {sT[7]}, {sW}, 1")
        A(f"s_mul_i32 {sT[0]}, {sT[7]}, 28672")
        A(f"s_add_u32 {sT[0]}, {sT[0]}, {QKVW}")
        A(f"v_lshrrev_b32 {vT[2]}, 5, {vL}")
        A(f"v_lshlrev_b32 {vT[2]}, 8, {vT[2]}")
        A(f"v_add3_u32 {vT[2]}, {vT[2]}, {vTQ}, {sT[0]}")
        A.lines(self.colsum(vT[2], lambda ks: ks * 1024, 512, 208, 176, 224))
        A.lines(self.cs_save(208, sT[7], QSCR, 0))
        A.settle()
        A(f"{l}:")
        self.phase_end("qkv")

    def init_poll(self):
        A = self.A
        l = self.lab("ip")
        A(f"s_mov_b32 {sT[1]}, 0")
        A(f"{l}_loop:")
        A(f"buffer_load_dword v251, {vL4}, {sDBG}, 0 offen sc1")
        A(f"s_add_u32 {sT[1]}, {sT[1]}, 1")
        A(f"s_cmp_gt_u32 {sT[1]}, 0x40000")
        A(f"s_cbranch_scc1 {l}_out")
        A("s_waitcnt vmcnt(0)")
        A(f"v_cmp_gt_u32 vcc, 4, v251")
        A(f"s_cbranch_vccnz {l}_loop")
        A(f"{l}_out:")
        A("s_waitcnt vmcnt(0)")

    def attention(self):
        A = self.A
        self.poll(0, 16)
        self.ts("att_polled")
        Q, S, P, O = 16, 176, 80, 96
        RD = self.opt.get('ring', 5)
        KV = lambda kt, j: ar(16 * (kt % RD) + 4 * j)
        sKV = sT[7]
        A(f"v_mov_b32 {vT[0]}, {LA}")
        A(f"ds_read_b32 v160, {vT[0]}")
        A(f"s_lshl_b32 {sKV}, {sAH}, 6")
        A(f"s_lshl_b32 {sT[2]}, {sW}, 4")
        A(f"s_add_u32 {sKV}, {sKV}, {sT[2]}")
        A(f"s_lshl_b32 {sKV}, {sKV}, 12")
        A(f"s_add_u32 {sKV}, {sKV}, {sLB}")
        A(f"s_add_u32 {sKV}, {sKV}, {KV_OFF}")
        A(f"s_mov_b32 {sT[6]}, {sKV}")
        def kvload(kt, j):
            L = []
            if j == 0 and kt > 0:
                L.append(f"s_add_u32 {sKV}, {sKV}, 4096")
            L.append(f"buffer_load_dwordx4 {KV(kt, j)}, {vL16}, {sWS}, {sKV} offen offset:{1024*j} sc1 @kv{kt}")
            return L
        A.lines(kvload(0, 0) + kvload(0, 1))
        A(f"s_lshl_b32 {sT[2]}, {sAH}, 6")
        A(f"s_lshl_b32 {sT[3]}, {sAQB}, 2")
        A(f"s_add_u32 {sT[2]}, {sT[2]}, {sT[3]}")
        for j in range(4):
            A(f"s_add_u32 {sT[3]}, {sW}, {j}")
            A(f"s_and_b32 {sT[3]}, {sT[3]}, 3")
            A(f"s_add_u32 {sT[3]}, {sT[3]}, {sT[2]}")
            A(f"s_lshl_b32 {sT[3]}, {sT[3]}, 11")
            A(f"s_add_u32 {sT[3]}, {sT[3]}, {sLB}")
            for k in range(2):
                A(f"buffer_load_dwordx4 {vr(Q+8*j+4*k)}, {vL16}, {sWS}, {sT[3]} offen offset:{1024*k} sc1")
            if j == 1:
                A.lines(kvload(0, 2) + kvload(0, 3))
        for i in range(0, 64, 2):
            A(f"v_pk_mov_b32 {vr(O+i,2)}, 0, 0")
        A("v_cmp_lt_u32 vcc, 0xffff, v160")
        lf = self.lab("fast")
        A.settle()
        A(f"s_cbranch_vccz {lf}")
        saved = (list(A.vm), list(A.lg))
        self.att_fallback(Q, S)
        A.vm, A.lg = saved
        A(f"{lf}:")
        def unit(u):
            kt, j = divmod(u, 4)
            if kt == 15:
                j = (j + 1) % 4
            return kt, j
        def smm(u, k):
            kt, j = unit(u)
            s = vr(S + 16 * (u % 3), 16)
            return [f"{MF} {s}, {KV(kt, k)}, {vr(Q+8*j+4*k)}, {s if k else '0'}"]
        def pv(u, k):
            kt, j = unit(u)
            o = vr(O + 16 * j, 16)
            return f"{MF} {o}, {KV(kt, 2+k)}, {vr(P+4*k)}, {o}"
        def ex(u, g):
            s = S + 16 * (u % 3)
            return [f"v_exp_f32 v{s+4*g+i}, v{s+4*g+i}" for i in range(4)]
        def cv(u, g):
            s = S + 16 * (u % 3)
            return [f"v_cvt_pk_bf16_f32 v{P+2*g+i}, v{s+4*g+2*i}, v{s+4*g+2*i+1}" for i in range(2)]
        def redw(j):
            L = [f"s_add_u32 {sT[2]}, {sW}, {j}", f"s_and_b32 {sT[2]}, {sT[2]}, 3", f"s_mul_i32 {sT[2]}, {sT[2]}, 12288",
                 f"s_add_u32 {sT[2]}, {sT[2]}, {LC + (j-1)*4096}", f"v_add_u32 {vT[j-1]}, {sT[2]}, {vL16}"]
            return L, [f"ds_write_b128 {vT[j-1]}, {vr(O+16*j+4*i)} offset:{1024*i}" for i in range(4)]
        slot = [[] for _ in range(256)]
        def kvbatch(kt, js):
            return [f"buffer_load_dwordx4 {KV(kt, j)}, {vL16}, {sWS}, {sKV} offen offset:{1024*j} sc1 @kv{kt}" for j in js]
        inc = f"s_add_u32 {sKV}, {sKV}, 4096"
        for kt in range(1, 16):
            u = (kt - 1) if kt < RD else 4 * (kt - RD + 1)
            slot[4 * u + 1].append(inc)
            slot[4 * u + 2] += kvbatch(kt, range(4))
            if kt >= 3:
                slot[4 * (4 * kt - 2) + 3].append(f"@wait_tag kv{kt}")
        jobs = []
        sD = ["s98", "s99", "s100", "s101"]
        for srd, base in ((sWO, LA), (sW1, LBB)):
            for b in range(4):
                n = 4 if b < 3 else 2
                if b == 0:
                    pre = [f"s_mul_i32 {sD[0]}, {sW}, {14*8*896}", f"s_lshl_b32 {sT[3]}, {sFT}, 7",
                           f"s_add_u32 {sD[0]}, {sD[0]}, {sT[3]}", f"s_mul_i32 {sT[3]}, {sW}, {14*1024}",
                           f"s_add_u32 m0, {sT[3]}, {base}"]
                    pre += [f"s_add_u32 {sD[i]}, {sD[0]}, {i*6144}" for i in range(1, 4)]
                else:
                    pre = [f"s_add_u32 {sD[i]}, {sD[i]}, 28672" for i in range(n)] + ["s_add_u32 m0, m0, 4096"]
                jobs.append((pre, [f"buffer_load_dwordx4 {vDM}, {srd}, {sD[i]} offen offset:{1024*i} lds @dma" for i in range(n)]))
        if self.opt.get("warm", 1):
            for srd, n, per in ((sW2, 4, 3136), (sW3, 13, 12544)):
                for b in range(0, n, 4):
                    if b == 0:
                        pre = [f"s_lshl_b32 {sT[3]}, {sSLOT}, 2", f"s_add_u32 {sT[3]}, {sT[3]}, {sW}", f"s_mul_i32 {sT[3]}, {sT[3]}, {per}"]
                    else:
                        pre = [f"s_add_u32 {sT[3]}, {sT[3]}, 4096"]
                    jobs.append((pre, [f"buffer_load_dwordx4 v[64:67], {vL16}, {srd}, {sT[3]} offen offset:{1024*i} @nodst"
                                       for i in range(min(4, n - b))]))
        pos = 4 * 6
        step = (4 * 58 - pos) // len(jobs)
        for i, (pre, batch) in enumerate(jobs):
            p = max(pos, 4 * 6 + i * step)
            for x in pre:
                while slot[p]:
                    p += 1
                slot[p].append(x)
            p += 1
            while slot[p]:
                p += 1
            slot[p] += batch
            pos = p + 1
        assert pos < 4 * 60
        A.lines(smm(0, 0))
        A.lines(smm(0, 1))
        self.ts("att_first")
        for u in range(64):
            if u >= 61:
                a, w_ = redw(u - 60)
                slot[4 * u + 2] += a
                if u < 63:
                    slot[4 * u + 4] += w_[:2]
                    slot[4 * u + 5] += w_[2:]
                else:
                    last_w = w_
            ms = [smm(u + 1, 0) if u < 63 else [], smm(u + 1, 1) if u < 63 else [], [pv(u - 1, 1)] if u else [], [pv(u, 0)]]
            for g in range(4):
                A.lines(ms[g])
                A.lines(slot[4 * u + g])
                A.lines(ex(u, g))
                if (u, g) != (63, 3):
                    A.lines(cv(u, g))
        A.lines(last_w[:2])
        A.lines(cv(63, 3))
        A.lines(last_w[2:])
        A(pv(63, 1))
        self.ts("att_main")
        A(f"s_mul_i32 {sT[2]}, {sW}, 12288")
        A(f"s_add_u32 {sT[2]}, {sT[2]}, {LC}")
        A(f"v_add_u32 {vT[3]}, {sT[2]}, {vL16}")
        A("s_waitcnt lgkmcnt(0)")
        A("s_barrier")
        for j in range(3):
            for i in range(4):
                A(f"ds_read_b128 {vr(160+16*j+4*i)}, {vT[3]} offset:{4096*j+1024*i}")
        A(f"s_lshl_b32 {sT[2]}, {sAQB}, 2")
        A(f"s_add_u32 {sT[2]}, {sT[2]}, {sW}")
        A(f"s_lshl_b32 {sT[2]}, {sT[2]}, 15")
        A(f"s_lshl_b32 {sT[3]}, {sAH}, 11")
        A(f"s_add_u32 {sT[2]}, {sT[2]}, {sT[3]}")
        A(f"s_add_u32 {sT[2]}, {sT[2]}, {sLB}")
        A(f"s_add_u32 {sT[2]}, {sT[2]}, {O_OFF}")
        for j in range(3):
            for i in range(0, 16, 2):
                A(pk("add", O + i, O + i, 160 + 16 * j + i))
        A(f"v_mov_b32 {vT[0]}, v{O+12}")
        A(f"v_mov_b32 {vT[2]}, v{O+12}")
        A(f"v_permlane32_swap_b32 {vT[0]}, {vT[2]}")
        A(f"v_rcp_f32 {vT[2]}, {vT[2]}")
        for i in range(0, 16, 2):
            A(pk("mul", O + i, O + i, ("b", 12)))
        A.lines(self.pack_store(O, 16, sT[2], 0, lambda d, r: [f"v_cndmask_b32 v{r}, v{r}, 0, {sHI}"] if d >= 6 else []))
        self.ts("att_epi")
        self.signal(1)
        self.ts("att_sig")
        self.phase_end("att")

    def att_fallback(self, Q, S):
        A = self.A
        A.join()
        M = 164
        for j in range(4):
            A(f"v_mov_b32 v{M+j}, 0xff800000")
        A(f"s_mov_b32 {sT[5]}, 0")
        A(f"s_mov_b32 {sT[4]}, {sT[6]}")
        A.settle()
        l = self.lab("fb")
        A(f"{l}:")
        A(f"buffer_load_dwordx4 v[168:171], {vL16}, {sWS}, {sT[4]} offen sc1")
        A(f"buffer_load_dwordx4 v[172:175], {vL16}, {sWS}, {sT[4]} offen offset:1024 sc1")
        for j in range(4):
            s = vr(S, 16)
            A(f"{MF} {s}, v[168:171], {vr(Q+8*j)}, 0")
            A(f"{MF} {s}, v[172:175], {vr(Q+8*j+4)}, {s}")
            for i in range(8):
                A(f"v_max3_f32 v{M+j}, v{M+j}, v{S+2*i}, v{S+2*i+1}")
        A(f"s_add_u32 {sT[4]}, {sT[4]}, 4096")
        A(f"s_add_u32 {sT[5]}, {sT[5]}, 1")
        A(f"s_cmp_lt_u32 {sT[5]}, 16")
        A.join()
        A(f"s_cbranch_scc1 {l}")
        for j in range(4):
            A(f"v_mov_b32 {vT[0]}, v{M+j}")
            A(f"v_permlane32_swap_b32 {vT[0]}, v{M+j}")
            A(f"v_max_f32 v{M+j}, v{M+j}, {vT[0]}")
            A(f"s_add_u32 {sT[2]}, {sW}, {j}")
            A(f"s_and_b32 {sT[2]}, {sT[2]}, 3")
            A(f"s_lshl_b32 {sT[2]}, {sT[2]}, 10")
            A(f"s_add_u32 {sT[2]}, {sT[2]}, {LC}")
            A(f"v_add_u32 v{168+j}, {sT[2]}, {vL4}")
            A(f"s_lshl_b32 {sT[3]}, {sW}, 8")
            A(f"v_add_u32 {vT[1]}, {sT[3]}, v{168+j}")
            A(f"ds_write_b32 {vT[1]}, v{M+j}")
        A("s_waitcnt lgkmcnt(0)")
        A("s_barrier")
        for j in range(4):
            for w in range(4):
                A(f"ds_read_b32 v{S+4*j+w}, v{168+j} offset:{256*w}")
        for j in range(4):
            b = S + 4 * j
            A(f"v_max3_f32 v{b}, v{b}, v{b+1}, v{b+2}")
            A(f"v_max_f32 v{b}, v{b}, v{b+3}")
            A(f"v_sub_f32 v{b}, 0, v{b}")
            A(f"v_and_b32 v{b+1}, 0xffff0000, v{b}")
            A(f"v_sub_f32 v{b}, v{b}, v{b+1}")
            A(f"v_and_b32 v{b+2}, 0xffff0000, v{b}")
            A(f"v_sub_f32 v{b}, v{b}, v{b+2}")
            A(f"v_lshrrev_b32 v{b}, 16, v{b}")
            A(f"v_lshrrev_b32 v{b+1}, 16, v{b+1}")
            A(f"v_or_b32 v{b+1}, v{b+1}, v{b+2}")
            A(f"v_cndmask_b32 v{Q+8*j+6}, v{Q+8*j+6}, v{b+1}, {sHI}")
            A(f"v_cndmask_b32 v{Q+8*j+7}, v{Q+8*j+7}, v{b}, {sHI}")
        A.join()
        A("s_barrier")

    def small_pre(self, slot, nks, k4_of):
        A = self.A
        a0, a1 = vT[0], vT[1]
        khstride = k4_of(nks) * 512
        A(f"s_mul_i32 {sT[2]}, {sKH}, {khstride + 256}")
        A(f"s_add_u32 {sT[2]}, {sT[2]}, {slot}")
        A(f"v_add_u32 {a0}, {sT[2]}, {vTR}")
        A(f"v_xor_b32 {a1}, 256, {a0}")
        for k in range(nks):
            for j in range(2):
                A.lines(self.tr(("a", 8 * k + 4 * j), a1 if j else a0, k4_of(k) * 512, 1024))

    def small_main(self, nks, B, late, dma, shadow=None, post=None):
        A = self.A
        U = self.opt.get("sU", 8)
        A.lines(flat(B[:U]))
        q = list(B[U:]) + list(late)
        dma = list(dma)
        nd1 = self.opt.get("sD1", 5)
        mm = []
        for k in range(nks):
            for j in (1, 0):
                acc = vr(128 + 16 * j, 16)
                g = [f"{MF} {acc}, {ar(8*k+4*j)}, {vr(16+4*k)}, {acc if k else '0'}"]
                if q:
                    g += q.pop(0)
                elif nd1 and 2 * k >= nks:
                    g += dma.pop(0)
                    nd1 -= 1
                mm.append(g)
        fine = self.opt.get("fine", 0)
        A.lines(flat(mm[:1]))
        if fine:
            self.ts("s_first")
        A.lines(flat(mm[1:nks]))
        if fine:
            self.ts("s_half")
        A.lines(flat(mm[nks:]) + flat(q))
        if fine:
            self.ts("s_mfma")
        A(f"s_lshl_b32 {sT[2]}, {sW}, 12")
        A(f"s_add_u32 {sT[2]}, {sT[2]}, {LC}")
        A(f"v_add_u32 {vT[0]}, {sT[2]}, {vL16}")
        A(f"v_xor_b32 {vT[1]}, 8192, {vT[0]}")
        for i in range(4):
            A(f"ds_write_b128 {vT[0]}, {vr(144+4*i)} offset:{1024*i}")
        nd2 = self.opt.get("sD2", 3)
        A.lines(flat(dma[:nd2]))
        dma = dma[nd2:]
        A.lines(shadow or [])
        A("s_waitcnt lgkmcnt(0)")
        if fine:
            self.ts("s_prebar")
        A("s_barrier")
        if fine:
            self.ts("s_bar")
        for i in range(4):
            A(f"ds_read_b128 {vr(160+4*i)}, {vT[1]} offset:{1024*i}")
        A.lines(post or [])
        for i in range(0, 16, 2):
            A(pk("add", 128 + i, 128 + i, 160 + i))
        return dma

    def wo_phase(self):
        A = self.A
        self.small_pre(LA, 16, lambda k: 7 * (k >> 1) + 4 * (k & 1))
        l = self.lab("wocs")
        A(f"s_cmp_lg_u32 {sLAYER}, 0")
        A(f"s_cbranch_scc1 {l}_1")
        self.resid_unpack()
        A(f"s_lshl_b32 {sT[2]}, {sKH}, 8")
        A(f"s_add_u32 {sT[2]}, {sT[2]}, {LBB}")
        A(f"v_add_u32 {vT[2]}, {sT[2]}, {vTR}")
        A.lines(self.colsum(vT[2], lambda ks: ks * 2048, 1024, 208, 176, 224))
        A.lines(self.cs_save(208, sKH, W1SCR, 1536))
        A.settle()
        A(f"s_branch {l}_2")
        A(f"{l}_1:")
        A.lines(self.cs_restore(512, W3SCR, 32))
        A.lines(self.cs_restore(1536, W1SCR, 16))
        A.settle()
        A(f"{l}_2:")
        self.ts("wo_pre")
        self.poll(1, 16)
        self.ts("wo_polled")
        B = self.frag_loads(lambda i: vr(16 + 4 * i),
                            [f"s_lshl_b32 {sT[2]}, {sTB32}, 15", f"s_lshl_b32 {sT[4]}, {sKH}, 14",
                             f"s_add_u32 {sT[2]}, {sT[2]}, {sT[4]}", f"s_add_u32 {sT[2]}, {sT[2]}, {sLB}",
                             f"s_add_u32 {sT[2]}, {sT[2]}, {O_OFF}"], 16)
        dma = self.dma_tile64(sW2, 896, [f"s_lshl_b32 {sT[3]}, {sFT}, 7"], LA, vDM)
        sh = [f"v_accvgpr_read_b32 v{176+i}, a{aRES+i}" for i in range(16)]
        sh += [pk("add", 128 + i, 128 + i, 176 + i) for i in range(0, 16, 2)]
        dma = self.small_main(16, B, [], dma, sh, self.tile_off(XM_OFF, sT[2]))
        self.ts("wo_main")
        A.lines(self.pack_store(128, 16, sT[2]))
        A.lines(self.stats_out(128, SM_OFF, 24))
        self.ts("wo_epi")
        self.signal(2, dma + [f"v_accvgpr_write_b32 a{aRES+i}, v{128+i}" for i in range(16)])
        self.ts("wo_sig")
        self.phase_end("wo")

    def act_base(self, off):
        return [f"s_mul_i32 {sT[2]}, {sTB32}, 28672", f"s_mul_i32 {sT[4]}, {sKH}, 14336",
                f"s_add_u32 {sT[2]}, {sT[2]}, {sT[4]}", f"s_add_u32 {sT[2]}, {sT[2]}, {sLB}",
                f"s_add_u32 {sT[2]}, {sT[2]}, {off}"]

    def w1_phase(self):
        A = self.A
        self.small_pre(LBB, 14, lambda k: 4 * k)
        A.lines(self.dm_lane(vT[4], 3584))
        A(f"s_lshl_b32 {sT[2]}, {sKH}, 7")
        A(f"s_add_u32 {sT[2]}, {sT[2]}, {W1SCR}")
        A(f"v_lshrrev_b32 {vT[2]}, 5, {vL}")
        A(f"v_lshlrev_b32 {vT[2]}, 4, {vT[2]}")
        A(f"v_add_u32 {vT[2]}, {sT[2]}, {vT[2]}")
        for i in range(4):
            A(f"ds_read_b128 {vr(208+4*i)}, {vT[2]} offset:{32*i}")
        self.ts("w1_pre")
        A(f"v_lshrrev_b32 {vT[2]}, 3, {vL}")
        A(f"s_sub_u32 {sT[2]}, {sTB64}, 1")
        A(f"v_add_u32 {vT[2]}, {sT[2]}, {vT[2]}")
        A(f"v_and_b32 {vS3}, 3, {vT[2]}")
        A(f"v_mul_u32_u24 {vS3}, 7, {vS3}")
        A(f"v_and_b32 {vT[3]}, 7, {vL}")
        A(f"v_add_u32 {vS3}, {vS3}, {vT[3]}")
        A(f"v_lshlrev_b32 {vS3}, 10, {vS3}")
        A(f"v_bfe_u32 {vT[2]}, {vT[2]}, 2, 3")
        A(f"v_lshl_add_u32 {vS3}, {vT[2]}, 7, {vS3}")
        self.poll(2, 7)
        self.ts("w1_polled")
        A(f"s_add_u32 {sT[7]}, {sLB}, {SM_OFF}")
        B = self.frag_loads(lambda i: vr(16 + 4 * i), self.act_base(XM_OFF), 14)
        S = self.stats_loads(sT[7], sTB32, 224)
        dma = self.dma_tile64(sW3, 3584, [f"s_lshl_b32 {sT[3]}, {sF3}, 8"], LBB, vT[4])
        s1, s2, var, R, ka, kb, iR = "v240", "v241", "v242", "v243", 244, 246, 248
        sh = self.stats_sum(224, s1, s2) + self.stats_fin(s1, s2, vM, var)
        sh += [f"v_add_f32 {s1}, {sC[1]}, {var}", f"v_rsq_f32 {vR1}, {s1}", f"v_mul_f32 {var}, {var}, {vR1}",
               f"v_fma_f32 {var}, {var}, {vR1}, {sC[1]}", f"v_rsq_f32 {R}, {var}", f"v_mul_f32 {R}, {R}, {vR1}"]
        sh += self.gelu_consts(R, ka, kb, iR)
        dma = self.small_main(14, B, S, dma, sh, self.tile_off(H_OFF, sT[2]))
        self.ts("w1_main")
        g = self.gelu_pre(128, 208, 160, 8, ka, kb) + self.gelu_post(128, 160, iR, True)
        A.lines(flat(interleave(g, dma[:self.opt.get("w1D3", 6)])))
        dma = dma[self.opt.get("w1D3", 6):]
        A.lines(self.pack_store(128, 16, sT[2]))
        self.ts("w1_epi")
        self.signal(3, dma + ["s_nop 0"])
        self.ts("w1_sig")
        self.phase_end("w1")

    def w2_phase(self):
        A = self.A
        self.small_pre(LA, 14, lambda k: 4 * k)
        for gi in range(2):
            d, t = f"v{240+gi}", vT[2]
            A(f"s_add_u32 {sT[2]}, {sKH}, 1")
            if gi == 0:
                A(f"s_sub_u32 {sT[2]}, 0, {sT[2]}")
            A(f"s_lshl_b32 {sT[3]}, {sTB32}, 5")
            A(f"s_add_u32 {sT[2]}, {sT[2]}, {sT[3]}")
            A(f"v_and_b32 {t}, 31, {vL}")
            A(f"v_add_u32 {t}, {sT[2]}, {t}")
            A(f"v_cmp_gt_u32 vcc, 0x800, {t}")
            A(f"v_lshrrev_b32 {d}, 5, {t}")
            A(f"v_mul_u32_u24 {d}, 28672, {d}")
            A(f"v_and_b32 {t}, 31, {t}")
            A(f"v_lshlrev_b32 {t}, 4, {t}")
            A(f"v_add_u32 {d}, {d}, {t}")
            A(f"v_lshrrev_b32 {t}, 5, {vL}")
            A(f"v_lshlrev_b32 {t}, 9, {t}")
            A(f"v_add_u32 {d}, {d}, {t}")
            A(f"v_mov_b32 {t}, {OOB}")
            A(f"v_cndmask_b32 {d}, {t}, {d}, vcc")
        A.lines(self.dm_lane(vT[4], 3584))
        for i in range(16):
            A(f"v_accvgpr_read_b32 v{208+i}, a{aRES+i}")
        A(f"v_mov_b32 {vT[2]}, {vR1}")
        for i in range(0, 16, 2):
            A(pk("add", 224 + i, 208 + i, ("b", 8), neg=[0, 1]))
        for i in range(0, 16, 2):
            A(pk("mul", 224 + i, 224 + i, ("b", 12)))
        self.ts("w2_pre")
        self.poll(3, sN3)
        self.ts("w2_polled")
        B = self.frag_loads(lambda i: vr(16 + 4 * i),
                            [f"s_mul_i32 {sT[2]}, {sKH}, 14336", f"s_add_u32 {sT[2]}, {sT[2]}, {sLB}",
                             f"s_add_u32 {sT[2]}, {sT[2]}, {H_OFF}"], 14, vaddr=lambda i: f"v{240 + i//7}")
        dma = self.dma_tile64(sW3, 3584, [f"s_lshl_b32 {sT[3]}, {sF3}, 8", f"s_add_u32 {sT[3]}, {sT[3]}, 128"], LA, vT[4])
        sh = [pk("add", 128 + i, 128 + i, 224 + i) for i in range(0, 16, 2)]
        dma = self.small_main(14, B, [], dma, sh, self.tile_off(X1_OFF, sT[2]))
        self.ts("w2_main")
        A.lines(self.pack_store(128, 16, sT[2]))
        A.lines(self.stats_out(128, S1_OFF, 24))
        self.ts("w2_epi")
        aft = [pk("add", 208 + i, 208 + i, 128 + i) for i in range(0, 16, 2)]
        aft += [f"v_accvgpr_write_b32 a{aRES+i}, v{208+i}" for i in range(16)]
        self.signal(4, dma + aft)
        self.ts("w2_sig")
        self.phase_end("w2")

    @staticmethod
    def w4_page(i):
        if i < 5:
            return 0, i
        if i < 12:
            return 1, i - 5
        if i < 19:
            return 2, i - 12
        if i < 24:
            return 0, i - 19
        return 1, i - 24

    W4REG = ((LC, 10240), (LBB, 14336), (LA, 14336))

    def w4_dma(self, steps):
        G = []
        last = None
        for i in steps:
            reg, pg = self.w4_page(i)
            base, stride = self.W4REG[reg]
            for hf in range(2):
                L = []
                if reg != last:
                    L += [f"s_mul_i32 s63, {sW}, {stride}"]
                    last = reg
                L += [f"s_add_u32 {sT[3]}, {sG4}, {(16*i + 8*hf)*896}", f"s_add_u32 m0, s63, {base + pg*2048 + hf*1024}",
                      f"buffer_load_dwordx4 {vDM}, {sW4}, {sT[3]} offen lds @w4_{i}"]
                G.append(L)
        return G

    def w3_phase(self):
        A = self.A
        l = self.lab("w3cs")
        A(f"s_cmp_lg_u32 {sLAYER}, 0")
        A(f"s_cbranch_scc1 {l}")
        A("s_waitcnt vmcnt(0)")
        A("s_barrier")
        A(f"s_cmp_lt_u32 {sW}, 2")
        A(f"s_cselect_b32 {sT[2]}, {LBB}, {LA}")
        A(f"s_lshl_b32 {sT[3]}, {sNI}, 8")
        A(f"s_add_u32 {sT[2]}, {sT[2]}, {sT[3]}")
        A(f"v_add_u32 {vT[2]}, {sT[2]}, {vTR}")
        A.lines(self.colsum(vT[2], lambda ks: ks * 2048, 1024, 208, 176, 224))
        A.lines(self.cs_save(208, sW, W3SCR, 512))
        A.settle()
        A(f"{l}:")
        vB_, vA_, vS_ = "v250", "v251", "v252"
        A(f"v_lshrrev_b32 {vS_}, 5, {vL}")
        A(f"v_lshlrev_b32 {vS_}, 4, {vS_}")
        A(f"v_add_u32 {vS_}, {W3SCR}, {vS_}")
        A(f"v_add_u32 {vB_}, {LBB}, {vTR}")
        A(f"v_add_u32 {vA_}, {LA}, {vTR}")
        A(f"s_mul_i32 {sG4}, {sW}, {448*896}")
        A(f"s_lshl_b32 {sT[3]}, {sFT}, 7")
        A(f"s_add_u32 {sG4}, {sG4}, {sT[3]}")
        self.ts("w3_pre")
        self.poll(4, 14)
        self.ts("w3_polled")
        sTB, sO = sT[7], sT[1]
        A(f"s_lshl_b32 {sTB}, {sT128}, 2")
        A(f"s_add_u32 {sTB}, {sTB}, {sW}")
        B = self.frag_loads(lambda i: ar(4 * i),
                            [f"s_mul_i32 {sT[2]}, {sTB}, 28672", f"s_add_u32 {sT[2]}, {sT[2]}, {sLB}",
                             f"s_add_u32 {sT[2]}, {sT[2]}, {X1_OFF}"], 28)
        U = self.opt.get("w3U", 8)
        A.lines(flat(B[:U]))
        A(f"s_add_u32 {sT[6]}, {sLB}, {S1_OFF}")
        S = self.stats_loads(sT[6], sTB, 224)
        A(f"s_mul_i32 {sO}, {sTB}, 114688")
        A(f"s_lshl_b32 {sT[3]}, {sF3}, 13")
        A(f"s_add_u32 {sO}, {sO}, {sT[3]}")
        A(f"s_add_u32 {sO}, {sO}, {sLB}")
        A(f"s_add_u32 {sO}, {sO}, {G_OFF}")
        seq = [(i & 1, i >> 1) for i in range(56)] + [(mt, ks) for mt in (2, 3) for ks in range(28)]
        ACC, STG, CS, WB, PT = 16, 80, (112, 128), (144, 160), 176
        D = 6
        def rd(i):
            if i >= 112:
                return []
            mt, ks = seq[i]
            return self.tr(("v", STG + 4 * (i % 8)), vB_ if mt < 2 else vA_, (mt & 1) * 256 + ks * 2048, 1024)
        def mm(i):
            mt, ks = seq[i]
            acc = vr(ACC + 16 * mt, 16)
            return [f"{MF} {acc}, {vr(STG+4*(i%8))}, {ar(4*ks)}, {acc if ks else '0'}"] + rd(i + D)
        def csrd(mt):
            return [f"ds_read_b128 {vr(CS[mt&1]+4*i)}, {vS_} offset:{128*mt+32*i}" for i in range(4)]
        s1, s2, var, R, m, ka, kb, iR = "v240", "v241", "v242", "v243", 244, 246, 248, 238
        def pre(mt):
            return self.gelu_pre(ACC + 16 * mt, CS[mt & 1], WB[mt & 1], m, ka, kb)
        def post(mt, packed):
            L = self.gelu_post(ACC + 16 * mt, WB[mt & 1], iR, packed)
            if mt == 2:
                L.append(f"s_add_u32 {sO}, {sO}, 4096")
            return L + self.pack_store(ACC + 16 * mt, PT + 8 * (mt & 1), sO, (mt & 1) * 2048)
        for i in range(D):
            A.lines(rd(i))
        q = []
        for g in B[U:]:
            q += [g, []]
        q += S
        dC = self.w4_dma(range(5))
        st = self.stats_sum(224, s1, s2) + self.stats_fin(s1, s2, f"v{m}", var)
        st += [f"v_add_f32 {var}, {sC[1]}, {var}", f"v_rsq_f32 {R}, {var}"] + self.gelu_consts(R, ka, kb, iR)
        for i in range(56):
            A.lines(mm(i))
            if q:
                A.lines(q.pop(0))
            elif dC:
                A.lines(dC.pop(0))
        A.lines(csrd(0) + csrd(1))
        A.lines(flat(dC))
        A.lines(st)
        self.ts("w3_p1")
        A("s_barrier")
        A.lines(pre(0) + pre(1))
        A.lines(csrd(2))
        dB = self.w4_dma(range(5, 12))
        f = post(0, False) + post(1, False)
        f = interleave(f, dB[:8])
        A.lines(flat(interleave([mm(i) for i in range(56, 84)], f, end=27)))
        self.ts("w3_p2")
        A.lines(csrd(3))
        A.lines(pre(2))
        f = interleave(post(2, False), dB[8:])
        A.lines(flat(interleave([mm(i) for i in range(84, 112)], f, end=27)))
        self.ts("w3_p3")
        A("s_barrier")
        dA = self.w4_dma(range(12, 19))
        nA = self.opt.get("w3A", 14)
        A.lines(flat(interleave(pre(3) + post(3, True), dA[:nA], end=60)))
        self.ts("w3_epi")
        self.signal(5, dA[nA:] + ["s_nop 0"])
        self.ts("w3_sig")
        self.phase_end("w3")

    def w4_phase(self):
        A = self.A
        AD = 224
        for r, (base, stride) in enumerate(self.W4REG):
            A(f"s_mul_i32 {sT[2]}, {sW}, {stride}")
            A(f"s_lshl_b32 {sT[3]}, {sKH}, 8")
            A(f"s_add_u32 {sT[2]}, {sT[2]}, {sT[3]}")
            A(f"s_add_u32 {sT[2]}, {sT[2]}, {base}")
            A(f"v_add_u32 v{AD+2*r}, {sT[2]}, {vTR}")
            A(f"v_xor_b32 v{AD+2*r+1}, 256, v{AD+2*r}")
        sB = [sT[6], sT[7]]
        NS = 9 if self.opt.get("w4stage", 1) else 0
        for i in range(NS):
            reg, pg = self.w4_page(i)
            for ja in range(2):
                A.lines(self.tr(("a", 112 + 8 * i + 4 * ja), f"v{AD+2*reg+ja}", pg * 2048, 1024))
        if NS:
            A("s_waitcnt lgkmcnt(0)")
            A.lines(flat(self.w4_dma(range(19, 28))))
        self.ts("w4_pre")
        self.poll(5, 14)
        self.ts("w4_polled")
        for jb in range(2):
            A(f"s_xor_b32 {sB[jb]}, {sTB32}, {jb}")
            A(f"s_mul_i32 {sB[jb]}, {sB[jb]}, 114688")
            A(f"s_mul_i32 {sT[4]}, {sW}, 28672")
            A(f"s_add_u32 {sB[jb]}, {sB[jb]}, {sT[4]}")
            A(f"s_add_u32 {sB[jb]}, {sB[jb]}, {sLB}")
            A(f"s_add_u32 {sB[jb]}, {sB[jb]}, {G_OFF}")
        def breg(i, jb):
            return vr(16 + 8 * (i % 14) + 4 * jb)
        def bload(i):
            G = []
            for jb in range(2):
                L = []
                if i and i % 4 == 0:
                    L.append(f"s_add_u32 {sB[jb]}, {sB[jb]}, 4096")
                L.append(f"buffer_load_dwordx4 {breg(i, jb)}, {vL16}, {sWS}, {sB[jb]} offen offset:{(i%4)*1024} sc1")
                G.append(L)
            return G
        PB = self.opt.get("w4PB", 6)
        for i in range(PB):
            A.lines(flat(bload(i)))
        def rd(i):
            G = []
            if i < NS:
                return G
            reg, pg = self.w4_page(i)
            for ja in range(2):
                L = [f"@wait_tag w4_{i}"] if i >= 19 and ja == 0 else []
                G.append(L + self.tr(("v", 192 + 8 * (i % 4) + 4 * ja), f"v{AD+2*reg+ja}", pg * 2048, 1024))
            return G
        D = 3
        for i in range(D):
            A.lines(flat(rd(i)))
        refill = {i + 1: 19 + i for i in range(5)}
        refill.update({6 + i: 24 + i for i in range(4)})
        for i in range(28):
            mms = []
            order = (0, 1, 2, 3) if i < 27 else (1, 2, 3, 0)
            for j in order:
                ja, jb = j >> 1, j & 1
                acc = vr(128 + 16 * j, 16)
                wreg = ar(112 + 8 * i + 4 * ja) if i < NS else vr(192 + 8 * (i % 4) + 4 * ja)
                mms.append(f"{MF} {acc}, {wreg}, {breg(i, jb)}, {acc if i else '0'}")
            fill = []
            if i + PB < 28:
                fill += bload(i + PB)
            if i in refill and not NS:
                fill += self.w4_dma([refill[i]])
            if i + D < 28:
                fill += rd(i + D)
            A.lines(flat(interleave(mms, fill)))
        self.ts("w4_main")
        A(f"s_mul_i32 {sT[2]}, {sW}, 14336")
        A(f"v_add_u32 {vT[0]}, {sT[2]}, {vL16}")
        for j in (1, 2, 3):
            A(f"s_xor_b32 {sT[2]}, {sW}, {j}")
            A(f"s_mul_i32 {sT[2]}, {sT[2]}, 14336")
            A(f"v_add_u32 {vT[j]}, {sT[2]}, {vL16}")
        for i in range(16):
            A(f"v_accvgpr_read_b32 v{64+i}, a{aRES+i}")
        for j in (1, 2, 3):
            for i in range(4):
                A(f"ds_write_b128 {vT[0]}, {vr(128+16*j+4*i)} offset:{LA + (j-1)*4096 + 1024*i}")
        for i in range(0, 16, 2):
            A(pk("add", 128 + i, 128 + i, 64 + i))
        A("s_waitcnt lgkmcnt(0)")
        A("s_barrier")
        for j in (1, 2, 3):
            for i in range(4):
                A(f"ds_read_b128 {vr(16*j+4*i)}, {vT[j]} offset:{LA + (j-1)*4096 + 1024*i}")
        for j in (1, 2, 3):
            for i in range(0, 16, 2):
                A(pk("add", 128 + i, 128 + i, 16 * j + i))
        A.join()
        A(f"s_cmp_lg_u32 {sLAYER}, 0")
        A("s_cbranch_scc1 L_final")
        dq = self.dma_qkvw_packed()
        nq = self.opt.get("w4Q", 6)
        e = self.tile_off(XO_OFF, sT[2]) + self.pack_store(128, 16, sT[2]) + self.stats_out(128, SO_OFF, 24)
        A.lines(flat(dq[:nq]))
        A.lines(e)
        self.ts("w4_epi")
        self.signal(6, dq[nq:] + [f"v_accvgpr_write_b32 a{aRES+i}, v{128+i}" for i in range(16)])
        self.ts("w4_sig")

    def final_store(self):
        A = self.A
        A("L_final:")
        for d in range(8):
            A(f"v_cvt_pk_bf16_f32 v{16+d}, v{128+2*d}, v{128+2*d+1}")
        for b in (16, 20):
            A(f"v_permlane32_swap_b32 v{b}, v{b+2}")
            A(f"v_permlane32_swap_b32 v{b+1}, v{b+3}")
        d, t = vT[0], vT[1]
        A(f"v_and_b32 {d}, 31, {vL}")
        A(f"v_mul_u32_u24 {d}, 896, {d}")
        A(f"v_lshrrev_b32 {t}, 5, {vL}")
        A(f"v_lshlrev_b32 {t}, 4, {t}")
        A(f"v_add_u32 {d}, {d}, {t}")
        A(f"s_mul_i32 {sT[2]}, {sTB32}, {32*896}")
        A(f"s_lshl_b32 {sT[3]}, {sFT}, 7")
        A(f"s_add_u32 {sT[2]}, {sT[2]}, {sT[3]}")
        A(f"s_lshl_b32 {sT[3]}, {sKH}, 6")
        A(f"s_add_u32 {sT[2]}, {sT[2]}, {sT[3]}")
        A(f"buffer_store_dwordx4 v[16:19], {d}, {sOUT}, {sT[2]} offen")
        A(f"buffer_store_dwordx4 v[20:23], {d}, {sOUT}, {sT[2]} offen offset:32")
        self.ts("final")

    def idle(self):
        A = self.A
        A("L_idle:")
        A.vm, A.lg = [], []
        widx = [f"s_sub_u32 {sT[3]}, {sSLOT}, 28", f"s_lshl_b32 {sT[3]}, {sT[3]}, 2", f"s_add_u32 {sT[3]}, {sT[3]}, {sW}"]
        self.poll(2, 1)
        for i, g in enumerate(self.touch(sW4, widx, 784, 16) if self.opt.get("idle", 1) else []):
            A.lines([x.replace("v16,", f"v{16+i},") for x in g])
        A(f"s_cmp_lg_u32 {sLAYER}, 0")
        A("s_cbranch_scc1 L_finish")
        self.poll(5, 1)
        for i, g in enumerate(self.touch(sWS, widx, 672, 16, base=PK_OFF) if self.opt.get("idle", 1) else []):
            A.lines([x.replace("v16,", f"v{16+i},") for x in g])
        A.lines(flat(self.dma_qkvw_packed()))
        A.settle()

    def build(self):
        A = self.A
        self.prologue()
        A("L_layer:")
        self.qkv_phase()
        self.attention()
        A(f"s_cmp_eq_u32 {sACT}, 0")
        A("s_cbranch_scc1 L_idle" if not self.stop else "s_cbranch_scc1 L_idle2")
        self.wo_phase()
        self.w1_phase()
        self.w2_phase()
        self.w3_phase()
        self.w4_phase()
        A("s_branch L_next")
        if self.stop:
            A("L_idle2:")
            A(f"s_cmp_eq_u32 {sLAYER}, {self.stop[1]}")
            A("s_cbranch_scc1 L_finish")
        self.idle()
        A("L_next:")
        self.phase_end("w4")
        self.ts_store()
        A(f"s_mov_b32 {sLAYER}, 1")
        A(f"s_mov_b32 {sLB}, {LB0 + LBSTR}")
        A.vm, A.lg = [], []
        A("s_branch L_layer")
        self.final_store()
        A("L_finish:")
        self.ts_store()
        A("L_exit:")
        A("s_endpgm")
        head = open("cdna_kernels/%s.s.ref" % NAME).read().split("; Override launch")[0]
        return (head + "; Persistent fused kernel: 256 workgroups (one per CU), 4 waves x 512 registers.\n"
                "; @launch grid=(256,1,1) block=(256,1,1) lds=163840\n"
                '.amdgcn_target "amdgcn-amd-amdhsa--gfx950"\n.text\n'
                f".globl {NAME}_kernel\n.p2align 8\n.type {NAME}_kernel,@function\n{NAME}_kernel:\n"
                + A.text() +
                '.section .rodata,"a"\n.p2align 6\n'
                f".amdhsa_kernel {NAME}_kernel\n"
                "  .amdhsa_next_free_vgpr 512\n  .amdhsa_next_free_sgpr 102\n  .amdhsa_accum_offset 256\n"
                "  .amdhsa_group_segment_fixed_size 0\n  .amdhsa_kernarg_size 88\n  .amdhsa_user_sgpr_count 2\n"
                "  .amdhsa_user_sgpr_kernarg_segment_ptr 1\n  .amdhsa_system_sgpr_workgroup_id_x 1\n"
                ".end_amdhsa_kernel\n")


if __name__ == "__main__":
    import argparse, json
    ap = argparse.ArgumentParser()
    ap.add_argument("-o", default="k.s")
    ap.add_argument("--stop", default=None)
    ap.add_argument("--prof", type=int, default=0)
    ap.add_argument("--fb", action="store_true")
    ap.add_argument("--opt", default="")
    a = ap.parse_args()
    stop = None
    if a.stop:
        n, l = a.stop.split(":")
        stop = (n, int(l))
    opt = {kv.split("=")[0]: int(kv.split("=")[1]) for kv in a.opt.split(",") if kv}
    g = Gen(stop, a.prof, a.fb, opt)
    open(a.o, "w").write(g.build())
    json.dump(g.tsnames, open(a.o + ".ts.json", "w"))
    print("nops inserted:", g.A.nnop, "lines:", len(g.A.out))
```
